```python
import torch

def _softmax(x, axis=-1):
    return torch.softmax(x, dim=axis)
def _gelu(x):
    return torch.nn.functional.gelu(x, approximate="tanh")
def _silu(x):
    return torch.nn.functional.silu(x)
def _sigmoid(x):
    return torch.sigmoid(x)
def _layernorm(x, axis=-1, eps=1e-5):
    m = x.mean(dim=axis, keepdim=True)
    v = x.var(dim=axis, keepdim=True, unbiased=False)
    return (x - m) / torch.sqrt(v + eps)
def _scatter_add(tgt, idx, src, axis=0):
    return tgt.clone().index_add_(axis, idx, src)
def _segment_sum(src, seg, n):
    out = torch.zeros((n,) + src.shape[1:], dtype=src.dtype)
    return out.index_add_(0, seg, src)
def _pad(x, pw):
    flat = tuple(v for pair in reversed(pw) for v in pair)
    return torch.nn.functional.pad(x, flat)

kernel_name = 'standalone__paged_block_table_kv_pagedattention__sampling'

def setup_inputs():

    _w = (lambda a: (lambda t: t.to(torch.bfloat16) if t.is_floating_point() else t)(torch.as_tensor(a)))
    B, Hq, Hkv, Sq, Skv, D = 16, 32, 8, 32, 4096, 128
    bs = 16
    nbps = max(1, Skv // bs)
    num_phys = B * nbps + 4
    bt = torch.randperm(num_phys)[: B * nbps].reshape(B, nbps).to(torch.int64)
    cl = (nbps * bs - (torch.arange(1, B + 1, dtype=torch.int64) * 2654435761) % max(1, nbps * bs // 2)).to(torch.int64)
    return {
        "q": _w((lambda *s: torch.randn(*s, dtype=torch.bfloat16) * 0.8)(B, Hq, Sq, D)),
        "k_cache": _w((lambda *s: torch.randn(*s, dtype=torch.bfloat16) * 0.8)(num_phys, bs, Hkv, D)),
        "v_cache": _w((lambda *s: torch.randn(*s, dtype=torch.bfloat16) * 0.05)(num_phys, bs, Hkv, D)),
        "block_table": _w(bt),
        "context_lens": _w(cl),
    }

def reference(q, k_cache, v_cache, block_table, context_lens):
    B, Hq, Sq, D = q.shape
    bs = k_cache.shape[1]
    Hkv = k_cache.shape[2]
    nbps = block_table.shape[1]
    Skv = nbps * bs
    bt = block_table.reshape(-1)
    k = (lambda x, *d: x.permute(*d))(k_cache[bt].reshape(B, Skv, Hkv, D), 0, 2, 1, 3)
    v = (lambda x, *d: x.permute(*d))(v_cache[bt].reshape(B, Skv, Hkv, D), 0, 2, 1, 3)
    g = Hq // Hkv
    qg = q.reshape(B, Hkv, g, Sq, D)
    scores = torch.einsum("bhgqd,bhkd->bhgqk", qg, k) * (D ** -0.5)
    pos = torch.arange(Skv)
    msk = pos[None, :] < context_lens[:, None]
    scores = torch.where(msk[:, None, None, None, :], scores, -1e9)
    p = _softmax(scores, axis=-1)
    out = torch.einsum("bhgqk,bhkd->bhgqd", p, v)
    return out.reshape(B, Hq, Sq, D)
```

```python
import sys, math, struct
KN = "standalone__paged_block_table_kv_pagedattention__sampling_kernel"
WSB = 537395200
KVB = 4100*32768
QB = 16*32*32*128*2
BLK = 1088
PART = 16*BLK
SLOT = 2*PART
NS = 4
K0OFF = NS*SLOT
MISC = K0OFF + PART
LDS = MISC + 256
PSTRIDE = 69632
FLAGOFF = 32 << 20

def f2u(x): return struct.unpack("<I", struct.pack("<f", x))[0]

HEADER = open("standalone__paged_block_table_kv_pagedattention__sampling.s.ref").read().split("; Override")[0]

vKA = [2, 3]; vVA = 4; vKB = [5, 6]; vVB = 7; vL = 8; vT = 9; vE = [10, 11, 12, 13, 14, 15]
vQ = 16; vO = 48; vS = [112, 128]; vNM = 144; vP = [160, 168]; vF = 176; NF = 8; vX = 208
def R(b, n): return f"v[{b}:{b+n-1}]"

def gen(pol="nt", qpol="nt", delta=0, hx=0, stamp=0, PD=5, thr=1024.0, opol="", prio=0, enc=None, ppol='sc1', drop=''):
    L = []
    e = L.append
    e(HEADER.rstrip())
    e(f"; @launch grid=(256,1,1) block=(512,1,1) lds={LDS}")
    e('.amdgcn_target "amdgcn-amd-amdhsa--gfx950"')
    e(".text"); e(f".globl {KN}"); e(".p2align 8"); e(f".type {KN},@function"); e(f"{KN}:")
    e("s_cmp_ge_u32 s2, 256"); e("s_cbranch_scc1 L_end")
    e("s_load_dwordx16 s[4:19], s[0:1], 0")
    if stamp: e("s_memrealtime s[80:81]")
    e("v_lshrrev_b32 v2, 6, v0"); e("v_and_b32 v1, 63, v0")
    e("s_and_b32 s21, s2, 7")
    e("v_readfirstlane_b32 s20, v2")
    if hx: e(f"s_xor_b32 s21, s21, {hx}")
    e("s_lshr_b32 s22, s2, 4"); e("s_bfe_u32 s23, s2, 0x10003")
    e("s_lshl_b32 s24, s22, 2")
    e("s_cmp_ge_u32 s20, 4")
    e("s_waitcnt lgkmcnt(0)")
    e("s_load_dword s26, s[12:13], s24")
    e("s_cbranch_scc1 L_loader")

    def piece_setup():
        c = math.log2(math.e) / math.sqrt(128.0)
        e("s_cmp_gt_i32 s26, 0"); e(f"s_cselect_b32 s60, {hex(f2u(c))}, 0"); e("s_cselect_b32 s26, s26, 0x1000")
        e("s_min_u32 s26, s26, 0x1000")
        e("s_add_u32 s27, s26, 63"); e("s_lshr_b32 s27, s27, 6")
        e("s_add_u32 s51, s26, 15"); e("s_lshr_b32 s51, s51, 4")
        e(f"s_sub_i32 s24, s27, {delta}"); e("s_max_i32 s24, s24, 0"); e("s_lshr_b32 s24, s24, 1")
        e("s_cmp_eq_u32 s24, 0"); e("s_cselect_b32 s66, 1, 0")
        e("s_sub_u32 s25, s27, s24")
        e("s_sub_u32 s49, s27, 1")
        e("s_cmp_eq_u32 s23, 0")
        e("s_cselect_b32 s48, s24, s25"); e("s_cselect_b32 s49, 0, s49"); e("s_cselect_b32 s50, 1, -1")
        e("s_cmp_eq_u32 s48, 0"); e("s_cbranch_scc1 L_end")

    e("v_and_b32 v10, 31, v1"); e("v_lshrrev_b32 v11, 5, v1")
    e("v_and_b32 v12, 3, v10"); e("v_lshrrev_b32 v13, 4, v10"); e("v_lshl_add_u32 v12, v13, 2, v12")
    e("v_bfe_u32 v13, v10, 2, 2")
    e(f"v_mul_u32_u24 v12, {BLK}, v12"); e("v_lshl_add_u32 v12, v13, 8, v12")
    e("v_xor_b32 v14, v11, v13"); e(f"v_lshl_add_u32 v{vKB[0]}, v14, 4, v12")
    e("v_xor_b32 v14, 2, v14"); e(f"v_lshl_add_u32 v{vKB[1]}, v14, 4, v12")
    e("v_bfe_u32 v12, v1, 2, 2"); e(f"v_mul_u32_u24 v12, {BLK}, v12"); e("v_lshl_add_u32 v12, v11, 8, v12")
    e("v_bfe_u32 v13, v1, 4, 1"); e("v_lshl_add_u32 v12, v13, 5, v12")
    e("v_and_b32 v13, 3, v1"); e("v_lshl_add_u32 v12, v13, 3, v12"); e(f"v_add_u32 v{vVB}, {PART}, v12")
    e("v_lshrrev_b32 v12, 2, v10"); e("s_lshl_b32 s24, s20, 3"); e("v_add_u32 v12, s24, v12"); e(f"v_mul_u32_u24 v12, {BLK}, v12")
    e("v_and_b32 v13, 3, v10"); e("v_lshl_add_u32 v12, v13, 8, v12"); e(f"v_add_u32 v12, {3*SLOT}, v12")
    e("v_xor_b32 v14, v11, v13"); e(f"v_lshl_add_u32 v{vX}, v14, 4, v12")
    e("v_xor_b32 v14, 2, v14"); e(f"v_lshl_add_u32 v{vX+1}, v14, 4, v12")
    e(f"v_add_u32 v{vKA[0]}, {K0OFF}, v{vKB[0]}"); e(f"v_add_u32 v{vKA[1]}, {K0OFF}, v{vKB[1]}")
    for r in range(vO, vO+64): e(f"v_mov_b32 v{r}, 0")
    for r in range(vP[1], vP[1]+8): e(f"v_mov_b32 v{r}, 0")
    e(f"v_mov_b32 v{vL}, 0")
    if stamp == 2:
        for i in range(3): e(f"v_mov_b32 v{250+i}, 0")
    e(f"s_mov_b32 s61, {hex(f2u(thr))}")
    e("s_mov_b32 s28, s18"); e("s_and_b32 s29, s19, 0xffff"); e(f"s_mov_b32 s30, {WSB}"); e("s_mov_b32 s31, 0x20000")
    e("s_mov_b32 s40, s14"); e("s_and_b32 s41, s15, 0xffff"); e(f"s_mov_b32 s42, {QB}"); e("s_mov_b32 s43, 0x20000")
    e("s_cmp_lg_u32 s20, 0"); e("s_cbranch_scc1 L_noclr")
    e("s_lshl_b32 s24, s2, 7"); e(f"s_add_u32 s24, s24, {FLAGOFF}")
    e("s_mov_b64 exec, 1")
    e(f"buffer_store_dword v{vL}, v{vL}, s[28:31], s24 offen sc1")
    e("s_mov_b64 exec, -1")
    e("L_noclr:")
    e("s_waitcnt lgkmcnt(0)")
    piece_setup()
    if prio: e(f"s_setprio {prio}")
    e("s_lshl_b32 s24, s49, 6"); e("s_sub_u32 s24, s26, s24"); e(f"v_sub_u32 v{vX+2}, s24, v11")
    e("s_waitcnt vmcnt(0)")
    e("s_barrier")
    if stamp: e("s_memrealtime s[82:83]")
    for s in range(8):
        e(f"ds_read_b128 {R(vQ+4*s,4)}, v{vX+(s&1)} offset:{(s>>1)*64}")
    def kread(buf, kb, s): e(f"ds_read_b128 {R(vF+4*buf,4)}, v{vKA[s&1]} offset:{(s>>1)*64 + kb*8*BLK}")
    def vread(buf, s, db):
        for i in range(2): e(f"ds_read_b64_tr_b16 {R(vF+4*buf+2*i,2)}, v{vVA} offset:{s*4*BLK + i*512 + 64*db}")
    if stamp: e("s_waitcnt lgkmcnt(0)")
    for s in range(4): kread(s, 0, s)
    for s in range(8):
        e(f"s_waitcnt lgkmcnt({min(15, 7-s+4)})")
        for k in range(4):
            r = vQ+4*s+k; a, b2 = vE[(2*k) % 6], vE[(2*k+1) % 6]
            e(f"v_lshlrev_b32 v{a}, 16, v{r}"); e(f"v_and_b32 v{b2}, 0xffff0000, v{r}")
            e(f"v_mul_f32 v{a}, s60, v{a}"); e(f"v_mul_f32 v{b2}, s60, v{b2}")
            e(f"v_cvt_pk_bf16_f32 v{r}, v{a}, v{b2}")
    for s in range(4, 8): kread(s, 0, s)
    for i in range(16):
        kb, s = i >> 3, i & 7
        w = (7-i) + max(0, i-1) if i < 8 else (6 if i == 8 else 15-i)
        e(f"s_waitcnt lgkmcnt({w})")
        c = "0" if s == 0 else R(vS[kb], 16)
        e(f"v_mfma_f32_32x32x16_bf16 {R(vS[kb],16)}, {R(vF+4*(i&7),4)}, {R(vQ+4*s,4)}, {c}")
        if 1 <= i <= 8: kread(i-1, 1, i-1)
    e("s_mov_b32 s63, 0")
    e(f"v_mov_b32 v{vKA[0]}, v{vKB[0]}"); e(f"v_mov_b32 v{vKA[1]}, v{vKB[1]}"); e(f"v_mov_b32 v{vVA}, v{vVB}")
    e(f"v_mov_b32 v{vX+3}, 0xff800000")
    def tau(kb, r): return 32*kb + 4*(r & 3) + 2*((r >> 2) & 1) + 16*(r >> 3)
    def mask(kb):
        for r in range(16):
            e(f"v_cmp_lt_i32 vcc, {tau(kb, r)}, v{vX+2}"); e("s_nop 1")
            e(f"v_cndmask_b32 v{vS[kb]+r}, v{vX+3}, v{vS[kb]+r}, vcc")
    mask(0)
    def rowmax(S, d, t):
        e(f"v_max3_f32 v{d}, v{S}, v{S+1}, v{S+2}")
        for r in range(3, 15, 2): e(f"v_max3_f32 v{d}, v{d}, v{S+r}, v{S+r+1}")
        e(f"v_max_f32 v{d}, v{d}, v{S+15}")
        e(f"v_mov_b32 v{t}, v{d}"); e("s_nop 1")
        e(f"v_permlane32_swap_b32 v{d}, v{t}")
        e(f"v_max_f32 v{d}, v{d}, v{t}")
    rowmax(vS[0], vX+4, vX+5)
    mask(1)
    for r in range(16): e(f"v_sub_f32 v{vNM+r}, 0, v{vX+4}")
    for kb in range(2):
        for r in range(16): e(f"v_sub_f32 v{vS[kb]+r}, v{vS[kb]+r}, v{vX+4}")
    for r in range(vF, vF+32): e(f"v_mov_b32 v{r}, 0")

    ORDER = [('Q',0),('Q',1),('Q',2),('P',0,0),('Q',3),('P',0,1),('Q',4),('P',0,2),('Q',5),('P',0,3),('Q',6),('P',1,0),('Q',7),('P',1,1),('P',1,2),('P',1,3)]
    ORDER_P = [('P',a,b) for a in range(2) for b in range(4)]
    def sm_ops(p):
        S, P = vS[p], vP[p]
        ops = []
        E = vE
        def ex(r): ops.append((8, f"v_exp_f32 v{E[r % 6]}, v{S+r}"))
        def fin(k):
            a, b = E[(2*k) % 6], E[(2*k+1) % 6]
            if k == 0: ops.append((4, f"v_add_f32 v{vT}, v{a}, v{b}"))
            else:
                ops.append((4, f"v_add_f32 v{vT}, v{vT}, v{a}")); ops.append((4, f"v_add_f32 v{vT}, v{vT}, v{b}"))
            ops.append((4, f"v_cvt_pk_bf16_f32 v{P+k}, v{a}, v{b}"))
        ex(0); ex(1); ex(2)
        for k in range(8):
            if 2*k+3 < 16: ex(2*k+3)
            fin(k)
            if 2*k+4 < 16: ex(2*k+4)
        return ops
    fbn = [0]
    stubs = []
    def check(p):
        fbn[0] += 1; n = fbn[0]
        e(f"v_cmp_nge_f32 vcc, s61, v{vT}")
        e(f"s_cbranch_vccnz L_fbs{n}")
        e(f"L_fbr{n}:")
        e(f"v_add_f32 v{vL}, v{vL}, v{vT}")
        stubs.append((n, p))
    class Stream:
        def __init__(s): s.q = []
        def read(s, tag, n): s.q += [tag]*n
        def need(s, tags):
            idx = max([i for i, t in enumerate(s.q) if t in tags], default=-1)
            if idx < 0: return None
            n = len(s.q) - 1 - idx
            s.q = s.q[idx+1:]
            return n
    def mfma(m, half, buf):
        if m[0] == 'Q':
            s = m[1]; S = vS[half]
            c = R(vNM, 16) if s == 0 else R(S, 16)
            e(f"v_mfma_f32_32x32x16_bf16 {R(S,16)}, {R(vF+4*buf,4)}, {R(vQ+4*s,4)}, {c}")
        else:
            sp, db = m[1], m[2]
            e(f"v_mfma_f32_32x32x16_bf16 {R(vO+16*db,16)}, {R(vF+4*buf,4)}, {R(vP[half]+4*sp,4)}, {R(vO+16*db,16)}")
    def rd(st, m, half, buf, tag):
        if m[0] == 'Q': kread(buf, half, m[1]); st.read(tag, 1)
        else: vread(buf, 2*half+m[1], m[2]); st.read(tag, 2)
    def spread(ops, ngaps):
        tot = sum(c for c, _ in ops); out = [[] for _ in range(ngaps)]; acc = 0
        for c, t in ops:
            g = min(ngaps-1, int((acc + c/2) * ngaps / tot)); out[g].append(t); acc += c
        return out
    NREM = 3
    smA = spread(sm_ops(1), 16); smB = spread(sm_ops(0), 16)
    e("s_nop 1")
    for g in range(16-NREM):
        for t in smB[g]: e(t)
    e("s_mov_b32 s62, 1")
    e("s_waitcnt lgkmcnt(0)"); e("s_barrier")
    e("s_cmp_ge_u32 s62, s48"); e("s_cbranch_scc1 L_epi")

    def body(full):
        seq = [(m, 0) for m in (ORDER if full else ORDER_P)] + [(m, 1) for m in (ORDER if full else ORDER_P)]
        N = len(seq); nA = N//2
        st = Stream()
        nxt = [0]
        def issue_upto(k):
            while nxt[0] <= min(k, N-1):
                i = nxt[0]; rd(st, seq[i][0], seq[i][1], i % NF, i); nxt[0] += 1
        issue_upto(PD-NREM)
        for k in range(NREM):
            mfma(ORDER[16-NREM+k], 1, (32-NREM+k) % NF)
            issue_upto(PD-NREM+k+1)
            for t in smB[16-NREM+k]: e(t)
        check(0)
        smAl = smA if full else spread(sm_ops(1), nA)
        last = N-NREM if full else N
        for i in range(last):
            m, half = seq[i]
            if (i % 2 == 0) or not full:
                w = st.need([i, i+1] if full else [i])
                if w is not None: e(f"s_waitcnt lgkmcnt({w})")
            mfma(m, half, i % NF)
            issue_upto(i+PD+1)
            if half == 0:
                for t in smAl[i]: e(t)
                if i == nA-1: check(1)
            elif full:
                for t in smB[i-nA]: e(t)
            if full and i == N-PD-1:
                e(f"s_add_u32 s63, s63, {SLOT}"); e(f"s_cmp_eq_u32 s63, {NS*SLOT}"); e("s_cselect_b32 s63, 0, s63")
                e("s_add_u32 s62, s62, 1")
            if full and i == N-PD:
                e(f"v_add_u32 v{vKA[0]}, s63, v{vKB[0]}"); e(f"v_add_u32 v{vKA[1]}, s63, v{vKB[1]}"); e(f"v_add_u32 v{vVA}, s63, v{vVB}")
    e(".p2align 6")
    e("L_loop:")
    n0 = len(L)
    body(True)
    if drop:
        keep = []
        for t in L[n0:]:
            if 'm' in drop and t.startswith("v_mfma"): t = "s_nop 7" if 'n' in drop else None
            elif 'l' in drop and t.startswith("ds_read"): t = None
            elif 'v' in drop and (t.startswith("v_exp") or t.startswith("v_add_f32") or t.startswith("v_cvt")): t = None
            elif t.startswith("s_cbranch_vccnz"): t = None
            if t: keep.append(t)
        L[n0:] = keep
    if stamp == 2:
        e("s_waitcnt lgkmcnt(0)"); e("s_memtime s[90:91]"); e("s_waitcnt lgkmcnt(0)"); e("s_barrier")
        e("s_memtime s[92:93]"); e("s_memrealtime s[94:95]"); e("s_waitcnt lgkmcnt(0)")
        e("s_mov_b32 m0, s62"); e("s_nop 0")
        e("v_writelane_b32 v250, s90, m0"); e("v_writelane_b32 v251, s92, m0"); e("v_writelane_b32 v252, s94, m0")
        e("s_cmp_lt_u32 s62, s48")
    else:
        e("s_cmp_lt_u32 s62, s48")
        e("s_waitcnt lgkmcnt(0)"); e("s_barrier")
    e("s_cbranch_scc1 L_loop")
    e("L_epi:")
    body(False)
    if stamp: e("s_memrealtime s[84:85]")
    e(f"v_mov_b32 v{vT}, v{vL}"); e(f"v_sub_f32 v{vX}, 0, v{vNM}"); e("s_nop 0")
    e(f"v_permlane32_swap_b32 v{vL}, v{vT}")
    e(f"v_add_f32 v{vX+1}, v{vL}, v{vT}")
    e(f"v_mov_b32 v{vE[0]}, {MISC}")
    e("s_cmp_eq_u32 s66, 1"); e("s_cbranch_scc1 L_solo")
    e("s_barrier")
    e(f"ds_read_b32 v{vE[1]}, v{vE[0]}")
    e(f"v_lshlrev_b32 v{vE[2]}, 4, v1"); e(f"v_lshlrev_b32 v{vE[3]}, 3, v1")
    e("s_lshl_b32 s25, s20, 14")
    e("s_waitcnt lgkmcnt(0)")
    e(f"v_readfirstlane_b32 s67, v{vE[1]}")
    e("s_nop 3")
    e("s_cmp_eq_u32 s67, 0"); e("s_cbranch_scc0 L_owner")
    e(f"s_mul_i32 s24, s2, {PSTRIDE}"); e("s_add_u32 s25, s25, s24")
    for i in range(16):
        e(f"buffer_store_dwordx4 {R(vO+4*i,4)}, v{vE[2]}, s[28:31], s25 offen offset:{(i&3)*1024} {ppol}")
        if i & 3 == 3 and i < 15: e("s_add_u32 s25, s25, 4096")
    e("s_lshl_b32 s25, s20, 9"); e("s_add_u32 s25, s25, s24"); e("s_add_u32 s25, s25, 65536")
    e(f"buffer_store_dwordx2 {R(vX,2)}, v{vE[3]}, s[28:31], s25 offen sc1")
    e("s_waitcnt vmcnt(0)"); e("s_barrier")
    e("s_cmp_lg_u32 s20, 0"); e("s_cbranch_scc1 L_fin")
    e("s_lshl_b32 s24, s2, 7"); e(f"s_add_u32 s24, s24, {FLAGOFF}")
    e(f"v_mov_b32 v{vE[0]}, 0"); e(f"v_mov_b32 v{vE[1]}, 1")
    e("s_mov_b64 exec, 1")
    e(f"buffer_store_dword v{vE[1]}, v{vE[0]}, s[28:31], s24 offen sc1")
    e("s_mov_b64 exec, -1")
    e("s_branch L_fin")
    e("L_owner:")
    vO2 = 112
    e("s_xor_b32 s24, s2, 8"); e(f"s_mul_i32 s24, s24, {PSTRIDE}")
    e("s_lshl_b32 s67, s20, 9"); e("s_add_u32 s67, s67, s24"); e("s_add_u32 s67, s67, 65536")
    e(f"buffer_load_dwordx2 {R(vX+2,2)}, v{vE[3]}, s[28:31], s67 offen sc1")
    e("s_add_u32 s25, s25, s24")
    for i in range(16):
        e(f"buffer_load_dwordx4 {R(vO2+4*i,4)}, v{vE[2]}, s[28:31], s25 offen offset:{(i&3)*1024} sc1")
        if i & 3 == 3 and i < 15: e("s_add_u32 s25, s25, 4096")
    e("s_waitcnt vmcnt(16)")
    e(f"v_max_f32 v{vX+4}, v{vX}, v{vX+2}")
    e(f"v_sub_f32 v{vX}, v{vX}, v{vX+4}"); e(f"v_sub_f32 v{vX+2}, v{vX+2}, v{vX+4}")
    e(f"v_exp_f32 v{vX}, v{vX}"); e(f"v_exp_f32 v{vX+2}, v{vX+2}"); e("s_nop 0")
    e(f"v_mul_f32 v{vX+1}, v{vX}, v{vX+1}"); e(f"v_fmac_f32 v{vX+1}, v{vX+2}, v{vX+3}")
    e(f"v_rcp_f32 v{vX+1}, v{vX+1}"); e("s_nop 0")
    e(f"v_mul_f32 v{vX}, v{vX}, v{vX+1}"); e(f"v_mul_f32 v{vX+2}, v{vX+2}, v{vX+1}")
    for r in range(64): e(f"v_mul_f32 v{vO+r}, v{vX}, v{vO+r}")
    for i in range(16):
        e(f"s_waitcnt vmcnt({15-i})")
        for k in range(4): e(f"v_fmac_f32 v{vO+4*i+k}, v{vX+2}, v{vO2+4*i+k}")
    e("s_branch L_store")
    e("L_solo:")
    e(f"v_rcp_f32 v{vX+1}, v{vX+1}"); e("s_nop 7")
    for r in range(64): e(f"v_mul_f32 v{vO+r}, v{vX+1}, v{vO+r}")
    e("L_store:")
    e("s_lshl_b32 s24, s22, 18"); e("s_lshl_b32 s25, s21, 15"); e("s_add_u32 s24, s24, s25"); e("s_lshl_b32 s25, s20, 13"); e("s_add_u32 s24, s24, s25")
    e(f"v_and_b32 v{vE[0]}, 31, v1"); e(f"v_lshlrev_b32 v{vE[0]}, 8, v{vE[0]}"); e(f"v_lshrrev_b32 v{vE[1]}, 5, v1"); e(f"v_lshl_add_u32 v{vE[0]}, v{vE[1]}, 4, v{vE[0]}")
    for i in range(8):
        db, gp = i >> 1, i & 1
        d = vQ + 4*i; o = vO + 16*db + 8*gp
        for k in range(4): e(f"v_cvt_pk_bf16_f32 v{d+k}, v{o+2*k}, v{o+2*k+1}")
        e("s_nop 1")
        e(f"v_permlane32_swap_b32 v{d}, v{d+2}"); e(f"v_permlane32_swap_b32 v{d+1}, v{d+3}")
        e(f"buffer_store_dwordx4 {R(d,4)}, v{vE[0]}, s[40:43], s24 offen offset:{64*db+32*gp} {opol}")
    e("L_fin:")
    if enc is not None:
        T, which = enc
        e("s_waitcnt vmcnt(0)")
        e("s_memrealtime s[86:87]")
        e("s_waitcnt lgkmcnt(0)")
        e(f"s_add_u32 s90, s{which}, {T*100}")
        e("L_spin:")
        e("s_memrealtime s[92:93]"); e("s_waitcnt lgkmcnt(0)")
        e("s_sub_u32 s91, s92, s90"); e("s_cmp_lt_i32 s91, 0"); e("s_cbranch_scc1 L_spin")
        e("s_endpgm")
    if stamp:
        e("s_waitcnt vmcnt(0)")
        e("s_memrealtime s[86:87]"); e("s_getreg_b32 s88, hwreg(HW_REG_XCC_ID)")
        e("s_cmp_lg_u32 s20, 0"); e("s_cbranch_scc1 L_end")
        e("s_waitcnt lgkmcnt(0)")
        for i, r in enumerate(["s80", "s82", "s84", "s86", "s88", "s21", "s48", "s26"]): e(f"v_mov_b32 v{16+i}, {r}")
        e("s_lshl_b32 s24, s2, 5"); e(f"s_add_u32 s24, s24, {WSB-256*32}"); e("v_mov_b32 v2, 0")
        if stamp == 2:
            e("s_mul_i32 s25, s2, 768"); e(f"s_add_u32 s25, s25, {WSB-256*32-256*768}"); e("v_lshlrev_b32 v3, 2, v1")
            for i in range(3): e(f"buffer_store_dword v{250+i}, v3, s[28:31], s25 offen offset:{256*i}")
        e("s_mov_b64 exec, 1")
        e("buffer_store_dwordx4 v[16:19], v2, s[28:31], s24 offen"); e("buffer_store_dwordx4 v[20:23], v2, s[28:31], s24 offen offset:16")
    e("s_endpgm")
    for n, p in stubs:
        e(f"L_fbs{n}:"); e(f"s_call_b64 s[64:65], L_fb{p}"); e(f"s_branch L_fbr{n}")
    for p in range(2):
        S, So, P = vS[p], vS[1-p], vP[p]
        e(f"L_fb{p}:")
        e("s_nop 15"); e("s_nop 15")
        rowmax(S, vX+4, vX+5)
        e(f"v_max_f32 v{vX+4}, 0, v{vX+4}")
        e(f"v_sub_f32 v{vX+5}, 0, v{vX+4}"); e(f"v_exp_f32 v{vX+5}, v{vX+5}")
        for r in range(16): e(f"v_sub_f32 v{vNM+r}, v{vNM+r}, v{vX+4}")
        for r in range(16): e(f"v_sub_f32 v{S+r}, v{S+r}, v{vX+4}")
        for r in range(16): e(f"v_sub_f32 v{So+r}, v{So+r}, v{vX+4}")
        for r in range(64): e(f"v_mul_f32 v{vO+r}, v{vX+5}, v{vO+r}")
        e(f"v_mul_f32 v{vL}, v{vX+5}, v{vL}")
        for c, t in sm_ops(p): e(t)
        e("s_nop 1")
        e("s_setpc_b64 s[64:65]")

    e(".p2align 6")
    e("L_loader:")
    e("s_sub_u32 s20, s20, 4")
    e("s_mov_b32 s28, s10"); e("s_and_b32 s29, s11, 0xffff"); e("s_mov_b32 s30, 16384"); e("s_mov_b32 s31, 0x20000")
    e("s_lshl_b32 s24, s22, 10"); e("s_lshl_b32 s25, s20, 2"); e("s_add_u32 s24, s24, s25")
    e("v_lshlrev_b32 v3, 4, v1")
    e("buffer_load_dword v4, v3, s[28:31], s24 offen")
    e("s_mov_b32 s68, s18"); e("s_and_b32 s69, s19, 0xffff"); e(f"s_mov_b32 s70, {WSB}"); e("s_mov_b32 s71, 0x20000")
    e("v_mov_b32 v20, 0")
    e("s_mov_b32 s40, s4"); e("s_and_b32 s41, s5, 0xffff"); e(f"s_mov_b32 s42, {QB}"); e("s_mov_b32 s43, 0x20000")
    e("v_lshrrev_b32 v5, 4, v1"); e("v_and_b32 v6, 15, v1"); e("v_xor_b32 v7, v6, v5"); e("v_lshlrev_b32 v7, 4, v7")
    e("v_lshl_add_u32 v16, v5, 8, v7")
    e("s_lshl_b32 s24, s22, 18"); e("s_lshl_b32 s25, s21, 15"); e("s_add_u32 s24, s24, s25"); e("s_lshl_b32 s25, s20, 13"); e("s_add_u32 s24, s24, s25")
    e(f"s_mul_i32 s25, s20, {8*BLK}"); e(f"s_add_u32 s25, s25, {3*SLOT}")
    for j in range(8):
        e("s_mov_b32 m0, s25"); e(f"s_add_u32 s25, s25, {BLK}")
        e(f"buffer_load_dwordx4 v16, s[40:43], s24 offen {qpol} lds")
        e("s_add_u32 s24, s24, 1024")
    e("s_lshl_b32 s24, s21, 8")
    e("s_add_u32 s32, s6, s24"); e("s_addc_u32 s33, s7, 0"); e("s_and_b32 s33, s33, 0xffff"); e(f"s_sub_u32 s34, {KVB}, s24"); e("s_mov_b32 s35, 0x20000")
    e("s_add_u32 s36, s8, s24"); e("s_addc_u32 s37, s9, 0"); e("s_and_b32 s37, s37, 0xffff"); e("s_mov_b32 s38, s34"); e("s_mov_b32 s39, 0x20000")
    e("s_mov_b32 s59, s34")
    e("v_lshl_add_u32 v7, v5, 11, v7"); e("v_lshlrev_b32 v6, 4, v6"); e("v_lshl_add_u32 v6, v5, 11, v6")
    for j in range(4):
        e(f"v_add_u32 v{8+j}, {j*(8192-BLK)}, v7"); e(f"v_add_u32 v{12+j}, {j*(8192-BLK)}, v6")
    e("s_mov_b32 s44, s16"); e("s_and_b32 s45, s17, 0xffff"); e("s_mov_b32 s46, 256"); e("s_mov_b32 s47, 0x20000")
    e("s_waitcnt lgkmcnt(0)")
    piece_setup()
    e(f"s_mul_i32 s53, s20, {4*BLK}")
    e("s_mov_b32 s52, s49"); e("s_mov_b32 s54, 0")
    e("s_waitcnt vmcnt(8)")
    e("v_lshlrev_b32 v4, 15, v4")
    def nextk():
        e("s_and_b32 s24, s52, 63")
        e("v_readlane_b32 s55, v4, s24")
        e("s_lshl2_add_u32 s24, s52, s20")
        e("s_cmp_lt_u32 s54, s48"); e("s_cselect_b32 s25, s51, 0")
        e("s_cmp_lt_u32 s24, s25"); e("s_cselect_b32 s55, s55, 0"); e("s_cselect_b32 s34, s59, 0")
        e("s_add_u32 s52, s52, s50"); e("s_add_u32 s54, s54, 1")
    def dma(v0, srd, so):
        for j in range(4): e(f"buffer_load_dwordx4 v{v0+j}, {srd}, {so} offen offset:{BLK*j} {pol} lds")
    def unit():
        e("s_mov_b32 s56, s55"); e("s_mov_b32 s38, s34")
        nextk()
        e("s_mov_b32 m0, s57"); e("s_nop 0")
        dma(8, "s[32:35]", "s55")
        e(f"s_add_u32 m0, s57, {PART}"); e(f"s_add_u32 s57, s57, {SLOT}")
        dma(12, "s[36:39]", "s56")
        e(f"s_cmp_ge_u32 s57, {NS*SLOT}"); e("s_cselect_b32 s57, s53, s57")
    e("s_nop 0")
    nextk()
    e(f"s_add_u32 m0, s53, {K0OFF}"); e("s_mov_b32 s57, s53")
    dma(8, "s[32:35]", "s55")
    unit(); unit(); unit()
    e("s_lshr_b32 s24, s2, 4"); e("s_lshl_b32 s24, s24, 3"); e("s_and_b32 s25, s2, 7"); e("s_add_u32 s24, s24, s25")
    e("s_and_b32 s25, s24, 1"); e("s_lshl_b32 s58, s25, 4")
    e("s_lshr_b32 s24, s24, 1"); e("s_lshl_b32 s24, s24, 2"); e("v_mov_b32 v21, s24")
    e("s_lshl_b32 s25, 1, s58"); e("v_mov_b32 v22, s25")
    e("s_mov_b32 s62, 0")
    def ticket(tag):
        e("s_add_u32 s24, s62, 1"); e("s_cmp_lg_u32 s24, s48"); e(f"s_cbranch_scc1 L_notk{tag}")
        e("s_or_b32 s24, s20, s66"); e("s_cmp_lg_u32 s24, 0"); e(f"s_cbranch_scc1 L_notk{tag}")
        e("s_mov_b64 exec, 1")
        e("buffer_atomic_add v22, v21, s[44:47], 0 offen sc0")
        e("s_mov_b64 exec, -1")
        e(f"L_notk{tag}:")
    e("s_waitcnt vmcnt(24)"); e("s_barrier")
    e("L_lloop:")
    ticket("a")
    e("s_waitcnt vmcnt(16)"); e("s_barrier")
    e("s_add_u32 s62, s62, 1"); e("s_cmp_ge_u32 s62, s48"); e("s_cbranch_scc1 L_ldone")
    unit()
    e("s_branch L_lloop")
    e("L_ldone:")
    e("s_or_b32 s24, s20, s66"); e("s_cmp_lg_u32 s24, 0"); e("s_cbranch_scc1 L_end")
    e("s_waitcnt vmcnt(0)")
    e("v_readfirstlane_b32 s24, v22"); e("s_nop 3")
    e("s_lshr_b32 s24, s24, s58"); e("s_and_b32 s67, s24, 1")
    e("s_cmp_eq_u32 s67, 0"); e("s_cbranch_scc1 L_role")
    e("s_xor_b32 s24, s2, 8"); e("s_lshl_b32 s24, s24, 7"); e(f"s_add_u32 s24, s24, {FLAGOFF}")
    e("s_mov_b64 exec, 1")
    e("s_mov_b32 s72, 0x40000")
    e("L_poll:")
    e("s_sub_u32 s72, s72, 1"); e("s_cbranch_scc1 L_pollx")
    e("buffer_load_dword v23, v20, s[68:71], s24 offen sc1")
    e("s_waitcnt vmcnt(0)")
    e("v_readfirstlane_b32 s25, v23"); e("s_nop 3")
    e("s_cmp_eq_u32 s25, 1"); e("s_cbranch_scc0 L_poll")
    e("L_pollx:")
    e("s_mov_b64 exec, -1")
    e("L_role:")
    e(f"v_mov_b32 v23, s67"); e(f"v_mov_b32 v24, {MISC}")
    e("ds_write_b32 v24, v23"); e("s_waitcnt lgkmcnt(0)"); e("s_barrier")
    e("L_end:"); e("s_endpgm")
    e('.section .rodata,"a"'); e(".p2align 6"); e(f".amdhsa_kernel {KN}")
    e("  .amdhsa_next_free_vgpr 256"); e("  .amdhsa_next_free_sgpr 102"); e("  .amdhsa_accum_offset 256"); e("  .amdhsa_group_segment_fixed_size 0")
    e("  .amdhsa_kernarg_size 64"); e("  .amdhsa_user_sgpr_count 2"); e("  .amdhsa_user_sgpr_kernarg_segment_ptr 1"); e("  .amdhsa_system_sgpr_workgroup_id_x 1")
    e(".end_amdhsa_kernel")
    return "\n".join(L) + "\n"
if __name__ == "__main__":
    from build import build
    specs = []
    for name, kw in eval(sys.argv[1]).items():
        open(name + ".s", "w").write(gen(**kw))
        specs.append(build(name + ".s"))
    print(" ".join(specs))
```

```python
import sys
KN = "standalone__paged_block_table_kv_pagedattention__sampling_kernel"
WSB = 537395200
KVB = 4100*32768
def gen(pol="nt", swz=1, qload=0, qpol="nt", dmin=8, dmax=8, clmin=2130, clmax=3979, hx=0, hboost=0, delay=0, split=128):
    L = []
    e = L.append
    NS = 5
    lds = NS*32768
    e(f"; @launch grid=(256,1,1) block=(256,1,1) lds={lds}")
    e('.amdgcn_target "amdgcn-amd-amdhsa--gfx950"')
    e(".text"); e(f".globl {KN}"); e(".p2align 8"); e(f".type {KN},@function"); e(f"{KN}:")
    e("s_cmp_ge_u32 s2, 256"); e("s_cbranch_scc1 L_end")
    e("s_memrealtime s[40:41]")
    e("s_load_dwordx16 s[4:19], s[0:1], 0")
    e("v_lshrrev_b32 v1, 6, v0"); e("v_and_b32 v2, 63, v0"); e("s_nop 0"); e("v_readfirstlane_b32 s20, v1")
    e("s_lshr_b32 s22, s2, 4"); e("s_and_b32 s21, s2, 7"); e(f"s_xor_b32 s21, s21, {hx}"); e("s_lshr_b32 s23, s2, 3"); e("s_and_b32 s23, s23, 1")
    e("s_waitcnt lgkmcnt(0)")
    e("s_lshl_b32 s24, s22, 2"); e("s_load_dword s26, s[12:13], s24")
    e("s_mov_b32 s28, s10"); e("s_and_b32 s29, s11, 0xffff"); e("s_mov_b32 s30, 16384"); e("s_mov_b32 s31, 0x20000")
    e("s_lshl_b32 s24, s22, 10"); e("s_lshl_b32 s25, s20, 2"); e("s_add_u32 s24, s24, s25")
    e("v_lshlrev_b32 v3, 4, v2")
    e("buffer_load_dword v4, v3, s[28:31], s24 offen")
    e("v_lshlrev_b32 v3, 2, v2")
    if qload:
        e("s_mov_b32 s44, s4"); e("s_and_b32 s45, s5, 0xffff"); e(f"s_mov_b32 s46, {16*32*32*128*2}"); e("s_mov_b32 s47, 0x20000")
        e("s_lshl_b32 s24, s22, 18"); e("s_lshl_b32 s25, s21, 15"); e("s_add_u32 s24, s24, s25"); e("s_lshl_b32 s25, s20, 13"); e("s_add_u32 s24, s24, s25")
        e("v_and_b32 v7, 31, v2"); e("v_lshlrev_b32 v7, 8, v7"); e("v_lshrrev_b32 v16, 5, v2"); e("v_lshl_add_u32 v7, v16, 4, v7")
        for j in range(8):
            e(f"buffer_load_dwordx4 v[{32+4*j}:{35+4*j}], v7, s[44:47], s24 offen offset:{32*j} {qpol}")
    e("s_lshl_b32 s24, s21, 8")
    e("s_add_u32 s32, s6, s24"); e("s_addc_u32 s33, s7, 0"); e("s_and_b32 s33, s33, 0xffff"); e(f"s_sub_u32 s34, {KVB}, s24"); e("s_mov_b32 s35, 0x20000")
    e("s_add_u32 s36, s8, s24"); e("s_addc_u32 s37, s9, 0"); e("s_and_b32 s37, s37, 0xffff"); e(f"s_sub_u32 s38, {KVB}, s24"); e("s_mov_b32 s39, 0x20000")
    e("s_mov_b32 s59, s34")
    e("v_lshrrev_b32 v5, 4, v2"); e("v_and_b32 v6, 15, v2")
    for j in range(4):
        if swz:
            e(f"v_xor_b32 v7, v6, v5"); e(f"v_xor_b32 v7, {4*j}, v7")
        else: e("v_mov_b32 v7, v6")
        e("v_lshlrev_b32 v7, 4, v7")
        e(f"v_lshl_add_u32 v7, v5, 11, v7"); e(f"v_add_u32 v{8+j}, {8192*j-1024*j}, v7")
        if swz:
            e(f"v_lshlrev_b32 v7, 2, v5"); e("v_xor_b32 v7, v6, v7")
        else: e("v_mov_b32 v7, v6")
        e("v_lshlrev_b32 v7, 4, v7")
        e(f"v_lshl_add_u32 v7, v5, 11, v7"); e(f"v_add_u32 v{12+j}, {8192*j-1024*j}, v7")
    e("s_waitcnt lgkmcnt(0)")
    e("s_add_u32 s27, s26, 63"); e("s_lshr_b32 s27, s27, 6")
    e(f"s_mul_i32 s24, s27, {split}"); e("s_lshr_b32 s24, s24, 8")
    e("s_cmp_eq_u32 s23, 0"); e("s_cselect_b32 s48, 0, s24"); e("s_cselect_b32 s49, s24, s27")
    e("s_add_u32 s50, s26, 15"); e("s_lshr_b32 s50, s50, 4")
    k = int(65536*(dmax-dmin)/(clmax-clmin))
    e(f"s_max_u32 s24, s26, {clmin}"); e(f"s_sub_u32 s24, s24, {clmin}"); e(f"s_mul_i32 s24, s24, {k}"); e("s_add_u32 s24, s24, 32768")
    if hboost:
        e("s_and_b32 s25, s21, 3"); e("s_cmp_eq_u32 s25, 1"); e(f"s_cselect_b32 s25, {int(hboost*65536)}, 0"); e("s_add_u32 s24, s24, s25")
    e("s_lshr_b32 s24, s24, 16"); e(f"s_add_u32 s77, s24, {dmin}"); e(f"s_min_u32 s77, s77, 8")
    e(f"s_waitcnt vmcnt({8 if qload else 0})")
    e("v_lshlrev_b32 v4, 15, v4")
    e("s_lshl_b32 s53, s20, 12")
    e("v_mov_b32 v30, 0")
    e("s_mov_b32 s51, s48"); e("s_mov_b32 s52, s53"); e("s_mov_b32 s78, s48"); e("s_add_u32 s79, s53, 16384")
    def issue(kv):
        t, sl, v0, srd, w2 = ("s51", "s52", 8, "s[32:35]", "s34") if kv == 0 else ("s78", "s79", 12, "s[36:39]", "s38")
        e(f"s_min_u32 s54, {t}, 63"); e("v_readlane_b32 s55, v4, s54")
        e(f"s_lshl_b32 s54, {t}, 2"); e("s_add_u32 s54, s54, s20")
        e(f"s_cmp_lt_u32 {t}, s49"); e("s_cselect_b32 s71, s50, 0")
        e("s_cmp_lt_u32 s54, s71"); e("s_cselect_b32 s55, s55, 0"); e(f"s_cselect_b32 {w2}, s59, 0")
        e(f"s_mov_b32 m0, {sl}"); e("s_nop 0")
        for j in range(4): e(f"buffer_load_dwordx4 v{v0+j}, {srd}, s55 offen offset:{1024*j} {pol} lds")
        e(f"s_add_u32 {t}, {t}, 1")
        e(f"s_add_u32 {sl}, {sl}, 32768"); e(f"s_cmp_ge_u32 {sl}, {lds}"); e(f"s_cselect_b32 s54, {lds}, 0"); e(f"s_sub_u32 {sl}, {sl}, s54")
    e("s_memrealtime s[42:43]")
    e("s_mov_b32 s57, s48"); e("s_mov_b32 s76, 8")
    dhi = 8
    for d in range(dmin, dhi+1):
        if d < dhi:
            e(f"s_cmp_lg_u32 s77, {d}"); e(f"s_cbranch_scc1 L_v{d+1}")
        for i in range(d): issue(i & 1)
        e(f"L_loop{d}:")
        e(f"s_waitcnt vmcnt({4*(d-2)})"); e("s_barrier")
        e("s_memrealtime s[60:61]")
        issue(d & 1); issue((d+1) & 1)
        if delay:
            e(f"s_mov_b32 s58, {delay}"); e(f"L_d{d}:"); e("s_nop 15"); e("s_sub_u32 s58, s58, 1"); e("s_cmp_lg_u32 s58, 0"); e(f"s_cbranch_scc1 L_d{d}")
        e("s_waitcnt lgkmcnt(0)"); e("s_mov_b32 m0, s76"); e("s_nop 0"); e("v_writelane_b32 v30, s60, m0"); e("s_add_u32 s76, s76, 1")
        e("s_add_u32 s57, s57, 1"); e("s_cmp_lt_u32 s57, s49"); e(f"s_cbranch_scc1 L_loop{d}")
        e("s_branch L_fin")
        if d < dhi: e(f"L_v{d+1}:")
    e("L_fin:")
    e("s_waitcnt vmcnt(0)")
    e("s_memrealtime s[60:61]")
    e("s_getreg_b32 s62, hwreg(HW_REG_XCC_ID)")
    e("s_waitcnt lgkmcnt(0)")
    e("s_mov_b32 s64, s18"); e("s_and_b32 s65, s19, 0xffff"); e(f"s_mov_b32 s66, {WSB}"); e("s_mov_b32 s67, 0x20000")
    e("s_lshl_b32 s24, s2, 8"); e(f"s_add_u32 s24, s24, {WSB-256*256}")
    e("s_lshl_b32 s77, s77, 16"); e("s_or_b32 s62, s62, s77")
    for i, r in enumerate(["s40", "s42", "s60", "s62", "s21", "s48", "s49", "s26"]): e(f"v_writelane_b32 v30, {r}, {i}")
    e("s_cmp_lg_u32 s20, 0"); e("s_cbranch_scc1 L_end")
    e("buffer_store_dword v30, v3, s[64:67], s24 offen")
    e("L_end:"); e("s_endpgm")
    e('.section .rodata,"a"'); e(".p2align 6"); e(f".amdhsa_kernel {KN}")
    e("  .amdhsa_next_free_vgpr 256"); e("  .amdhsa_next_free_sgpr 102"); e("  .amdhsa_accum_offset 256"); e("  .amdhsa_group_segment_fixed_size 0")
    e("  .amdhsa_kernarg_size 64"); e("  .amdhsa_user_sgpr_count 2"); e("  .amdhsa_user_sgpr_kernarg_segment_ptr 1"); e("  .amdhsa_system_sgpr_workgroup_id_x 1")
    e(".end_amdhsa_kernel")
    return "\n".join(L) + "\n"
if __name__ == "__main__":
    from build import build
    specs = []
    for name, kw in eval(sys.argv[1]).items():
        open(name + ".s", "w").write(gen(**kw))
        specs.append(build(name + ".s"))
    print(" ".join(specs))
```

```python
import re, sys
import gen1, gen_load3
from build import build
KN = gen1.KN
def body(txt):
    lines = txt.split("\n")
    i = next(k for k, l in enumerate(lines) if l.startswith(".text"))
    la = next(l for l in lines if "@launch" in l and "grid=" in l)
    return la, "\n".join(lines[i:])
def combo(name, atxt, btxt):
    la, a = body(atxt); lb, b = body(btxt)
    a = a.replace(KN, "pre_kernel"); a = re.sub(r"\bL_", "A_", a)
    out = la.replace("@launch", "@launch kernel=pre_kernel") + "\n" + lb.replace("@launch", f"@launch kernel={KN}") + "\n"
    out += '.amdgcn_target "amdgcn-amd-amdhsa--gfx950"\n' + a + b
    open(name + ".s", "w").write(out)
    return build(name + ".s")
if __name__ == "__main__":
    B = gen1.gen(stamp=1, enc=(150, 80))
    specs = []
    specs.append(combo("c_empty", open("empty.s").read(), B))
    specs.append(combo("c_nt", gen_load3.gen(pol="nt"), B))
    specs.append(combo("c_def", gen_load3.gen(pol=""), B))
    specs.append(combo("c_k1", gen1.gen(), B))
    specs.append(combo("c_dm", gen1.gen(drop='mlv'), B))
    specs.append(combo("c_dmd", gen1.gen(drop='mlv', pol='', qpol=''), B))
    print(" ".join(specs))
```

```python
import sys, math, struct
KN = "standalone__paged_block_table_kv_pagedattention__sampling_kernel"
WSB = 537395200
KVB = 4100*32768
QB = 16*32*32*128*2
BLK = 1088
PART = 16*BLK
SLOT = 2*PART
NS = 4
K0OFF = NS*SLOT
MISC = K0OFF + PART
LDS = MISC + 256
PSTRIDE = 69632
FLAGOFF = 32 << 20

def f2u(x): return struct.unpack("<I", struct.pack("<f", x))[0]

HEADER = open("standalone__paged_block_table_kv_pagedattention__sampling.s.ref").read().split("; Override")[0]

vKA = [2, 3]; vVA = 4; vKB = [5, 6]; vVB = 7; vL = 8; vT = 9; vE = [10, 11, 12, 13, 14, 15]
vQ = 16; vO = 48; vS = [112, 128]; vNM = 144; vP = [160, 168]; vF = 176; NF = 8; vX = 208
def R(b, n): return f"v[{b}:{b+n-1}]"

def gen(pol="nt", qpol="nt", delta=0, hx=0, stamp=0, PD=5, thr=1024.0, opol="", prio=0, enc=None, ppol='sc1', drop='', sleep=0):
    cnt16 = [0]
    L = []
    e = L.append
    e(HEADER.rstrip())
    e(f"; @launch grid=(256,1,1) block=(512,1,1) lds={LDS}")
    e('.amdgcn_target "amdgcn-amd-amdhsa--gfx950"')
    e(".text"); e(f".globl {KN}"); e(".p2align 8"); e(f".type {KN},@function"); e(f"{KN}:")
    e("s_cmp_ge_u32 s2, 256"); e("s_cbranch_scc1 L_end")
    e("s_load_dwordx16 s[4:19], s[0:1], 0")
    if stamp: e("s_memrealtime s[80:81]")
    e("v_lshrrev_b32 v2, 6, v0"); e("v_and_b32 v1, 63, v0")
    e("s_and_b32 s21, s2, 7")
    e("v_readfirstlane_b32 s20, v2")
    if hx: e(f"s_xor_b32 s21, s21, {hx}")
    e("s_lshr_b32 s22, s2, 4"); e("s_bfe_u32 s23, s2, 0x10003")
    e("s_lshl_b32 s24, s22, 2")
    e("s_cmp_ge_u32 s20, 4")
    e("s_waitcnt lgkmcnt(0)")
    e("s_load_dword s26, s[12:13], s24")
    e("s_cbranch_scc1 L_loader")

    def piece_setup():
        c = math.log2(math.e) / math.sqrt(128.0)
        e("s_cmp_gt_i32 s26, 0"); e(f"s_cselect_b32 s60, {hex(f2u(c))}, 0"); e("s_cselect_b32 s26, s26, 0x1000")
        e("s_min_u32 s26, s26, 0x1000")
        e("s_add_u32 s27, s26, 63"); e("s_lshr_b32 s27, s27, 6")
        e("s_add_u32 s51, s26, 15"); e("s_lshr_b32 s51, s51, 4")
        e(f"s_sub_i32 s24, s27, {delta}"); e("s_max_i32 s24, s24, 0"); e("s_lshr_b32 s24, s24, 1")
        e("s_cmp_eq_u32 s24, 0"); e("s_cselect_b32 s66, 1, 0")
        e("s_sub_u32 s25, s27, s24")
        e("s_sub_u32 s49, s27, 1")
        e("s_cmp_eq_u32 s23, 0")
        e("s_cselect_b32 s48, s24, s25"); e("s_cselect_b32 s49, 0, s49"); e("s_cselect_b32 s50, 1, -1")
        e("s_cmp_eq_u32 s48, 0"); e("s_cbranch_scc1 L_end")

    e("v_and_b32 v10, 31, v1"); e("v_lshrrev_b32 v11, 5, v1")
    e("v_and_b32 v12, 3, v10"); e("v_lshrrev_b32 v13, 4, v10"); e("v_lshl_add_u32 v12, v13, 2, v12")
    e("v_bfe_u32 v13, v10, 2, 2")
    e(f"v_mul_u32_u24 v12, {BLK}, v12"); e("v_lshl_add_u32 v12, v13, 8, v12")
    e("v_xor_b32 v14, v11, v13"); e(f"v_lshl_add_u32 v{vKB[0]}, v14, 4, v12")
    e("v_xor_b32 v14, 2, v14"); e(f"v_lshl_add_u32 v{vKB[1]}, v14, 4, v12")
    e("v_bfe_u32 v12, v1, 2, 2"); e(f"v_mul_u32_u24 v12, {BLK}, v12"); e("v_lshl_add_u32 v12, v11, 8, v12")
    e("v_bfe_u32 v13, v1, 4, 1"); e("v_lshl_add_u32 v12, v13, 5, v12")
    e("v_and_b32 v13, 3, v1"); e("v_lshl_add_u32 v12, v13, 3, v12"); e(f"v_add_u32 v{vVB}, {PART}, v12")
    e("v_lshrrev_b32 v12, 2, v10"); e("s_lshl_b32 s24, s20, 3"); e("v_add_u32 v12, s24, v12"); e(f"v_mul_u32_u24 v12, {BLK}, v12")
    e("v_and_b32 v13, 3, v10"); e("v_lshl_add_u32 v12, v13, 8, v12"); e(f"v_add_u32 v12, {3*SLOT}, v12")
    e("v_xor_b32 v14, v11, v13"); e(f"v_lshl_add_u32 v{vX}, v14, 4, v12")
    e("v_xor_b32 v14, 2, v14"); e(f"v_lshl_add_u32 v{vX+1}, v14, 4, v12")
    e(f"v_add_u32 v{vKA[0]}, {K0OFF}, v{vKB[0]}"); e(f"v_add_u32 v{vKA[1]}, {K0OFF}, v{vKB[1]}")
    for r in range(vO, vO+64): e(f"v_mov_b32 v{r}, 0")
    for r in range(vP[1], vP[1]+8): e(f"v_mov_b32 v{r}, 0")
    e(f"v_mov_b32 v{vL}, 0")
    if stamp == 2:
        for i in range(3): e(f"v_mov_b32 v{250+i}, 0")
    e(f"s_mov_b32 s61, {hex(f2u(thr))}")
    e("s_mov_b32 s28, s18"); e("s_and_b32 s29, s19, 0xffff"); e(f"s_mov_b32 s30, {WSB}"); e("s_mov_b32 s31, 0x20000")
    e("s_mov_b32 s40, s14"); e("s_and_b32 s41, s15, 0xffff"); e(f"s_mov_b32 s42, {QB}"); e("s_mov_b32 s43, 0x20000")
    e("s_cmp_lg_u32 s20, 0"); e("s_cbranch_scc1 L_noclr")
    e("s_lshl_b32 s24, s2, 7"); e(f"s_add_u32 s24, s24, {FLAGOFF}")
    e("s_mov_b64 exec, 1")
    e(f"buffer_store_dword v{vL}, v{vL}, s[28:31], s24 offen sc1")
    e("s_mov_b64 exec, -1")
    e("L_noclr:")
    e("s_waitcnt lgkmcnt(0)")
    piece_setup()
    if prio: e(f"s_setprio {prio}")
    e("s_lshl_b32 s24, s49, 6"); e("s_sub_u32 s24, s26, s24"); e(f"v_sub_u32 v{vX+2}, s24, v11")
    e("s_waitcnt vmcnt(0)")
    e("s_barrier")
    if stamp: e("s_memrealtime s[82:83]")
    for s in range(8):
        e(f"ds_read_b128 {R(vQ+4*s,4)}, v{vX+(s&1)} offset:{(s>>1)*64}")
    def kread(buf, kb, s): e(f"ds_read_b128 {R(vF+4*buf,4)}, v{vKA[s&1]} offset:{(s>>1)*64 + kb*8*BLK}")
    def vread(buf, s, db):
        for i in range(2): e(f"ds_read_b64_tr_b16 {R(vF+4*buf+2*i,2)}, v{vVA} offset:{s*4*BLK + i*512 + 64*db}")
    if stamp: e("s_waitcnt lgkmcnt(0)")
    for s in range(4): kread(s, 0, s)
    for s in range(8):
        e(f"s_waitcnt lgkmcnt({min(15, 7-s+4)})")
        for k in range(4):
            r = vQ+4*s+k; a, b2 = vE[(2*k) % 6], vE[(2*k+1) % 6]
            e(f"v_lshlrev_b32 v{a}, 16, v{r}"); e(f"v_and_b32 v{b2}, 0xffff0000, v{r}")
            e(f"v_mul_f32 v{a}, s60, v{a}"); e(f"v_mul_f32 v{b2}, s60, v{b2}")
            e(f"v_cvt_pk_bf16_f32 v{r}, v{a}, v{b2}")
    for s in range(4, 8): kread(s, 0, s)
    for i in range(16):
        kb, s = i >> 3, i & 7
        w = (7-i) + max(0, i-1) if i < 8 else (6 if i == 8 else 15-i)
        e(f"s_waitcnt lgkmcnt({w})")
        c = "0" if s == 0 else R(vS[kb], 16)
        e(f"v_mfma_f32_32x32x16_bf16 {R(vS[kb],16)}, {R(vF+4*(i&7),4)}, {R(vQ+4*s,4)}, {c}")
        if 1 <= i <= 8: kread(i-1, 1, i-1)
    e("s_mov_b32 s63, 0")
    e(f"v_mov_b32 v{vKA[0]}, v{vKB[0]}"); e(f"v_mov_b32 v{vKA[1]}, v{vKB[1]}"); e(f"v_mov_b32 v{vVA}, v{vVB}")
    e(f"v_mov_b32 v{vX+3}, 0xff800000")
    def tau(kb, r): return 32*kb + 4*(r & 3) + 2*((r >> 2) & 1) + 16*(r >> 3)
    def mask(kb):
        for r in range(16):
            e(f"v_cmp_lt_i32 vcc, {tau(kb, r)}, v{vX+2}"); e("s_nop 1")
            e(f"v_cndmask_b32 v{vS[kb]+r}, v{vX+3}, v{vS[kb]+r}, vcc")
    mask(0)
    def rowmax(S, d, t):
        e(f"v_max3_f32 v{d}, v{S}, v{S+1}, v{S+2}")
        for r in range(3, 15, 2): e(f"v_max3_f32 v{d}, v{d}, v{S+r}, v{S+r+1}")
        e(f"v_max_f32 v{d}, v{d}, v{S+15}")
        e(f"v_mov_b32 v{t}, v{d}"); e("s_nop 1")
        e(f"v_permlane32_swap_b32 v{d}, v{t}")
        e(f"v_max_f32 v{d}, v{d}, v{t}")
    rowmax(vS[0], vX+4, vX+5)
    mask(1)
    for r in range(16): e(f"v_sub_f32 v{vNM+r}, 0, v{vX+4}")
    for kb in range(2):
        for r in range(16): e(f"v_sub_f32 v{vS[kb]+r}, v{vS[kb]+r}, v{vX+4}")
    for r in range(vF, vF+32): e(f"v_mov_b32 v{r}, 0")

    ORDER = [('Q',0),('Q',1),('Q',2),('P',0,0),('Q',3),('P',0,1),('Q',4),('P',0,2),('Q',5),('P',0,3),('Q',6),('P',1,0),('Q',7),('P',1,1),('P',1,2),('P',1,3)]
    ORDER_P = [('P',a,b) for a in range(2) for b in range(4)]
    def sm_ops(p):
        S, P = vS[p], vP[p]
        ops = []
        E = vE
        def ex(r): ops.append((8, f"v_exp_f32 v{E[r % 6]}, v{S+r}"))
        def fin(k):
            a, b = E[(2*k) % 6], E[(2*k+1) % 6]
            if k == 0: ops.append((4, f"v_add_f32 v{vT}, v{a}, v{b}"))
            else:
                ops.append((4, f"v_add_f32 v{vT}, v{vT}, v{a}")); ops.append((4, f"v_add_f32 v{vT}, v{vT}, v{b}"))
            ops.append((4, f"v_cvt_pk_bf16_f32 v{P+k}, v{a}, v{b}"))
        ex(0); ex(1); ex(2)
        for k in range(8):
            if 2*k+3 < 16: ex(2*k+3)
            fin(k)
            if 2*k+4 < 16: ex(2*k+4)
        return ops
    fbn = [0]
    stubs = []
    def check(p):
        fbn[0] += 1; n = fbn[0]
        e(f"v_cmp_nge_f32 vcc, s61, v{vT}")
        e(f"s_cbranch_vccnz L_fbs{n}")
        e(f"L_fbr{n}:")
        e(f"v_add_f32 v{vL}, v{vL}, v{vT}")
        stubs.append((n, p))
    class Stream:
        def __init__(s): s.q = []
        def read(s, tag, n): s.q += [tag]*n
        def need(s, tags):
            idx = max([i for i, t in enumerate(s.q) if t in tags], default=-1)
            if idx < 0: return None
            n = len(s.q) - 1 - idx
            s.q = s.q[idx+1:]
            return n
    def mfma(m, half, buf):
        if m[0] == 'Q':
            s = m[1]; S = vS[half]
            c = R(vNM, 16) if s == 0 else R(S, 16)
            e(f"v_mfma_f32_32x32x16_bf16 {R(S,16)}, {R(vF+4*buf,4)}, {R(vQ+4*s,4)}, {c}")
        else:
            sp, db = m[1], m[2]
            e(f"v_mfma_f32_32x32x16_bf16 {R(vO+16*db,16)}, {R(vF+4*buf,4)}, {R(vP[half]+4*sp,4)}, {R(vO+16*db,16)}")
    def rd(st, m, half, buf, tag):
        if m[0] == 'Q': kread(buf, half, m[1]); st.read(tag, 1)
        else: vread(buf, 2*half+m[1], m[2]); st.read(tag, 2)
    def spread(ops, ngaps):
        tot = sum(c for c, _ in ops); out = [[] for _ in range(ngaps)]; acc = 0
        for c, t in ops:
            g = min(ngaps-1, int((acc + c/2) * ngaps / tot)); out[g].append(t); acc += c
        return out
    NREM = 3
    smA = spread(sm_ops(1), 16); smB = spread(sm_ops(0), 16)
    e("s_nop 1")
    for g in range(16-NREM):
        for t in smB[g]: e(t)
    e("s_mov_b32 s62, 1")
    e("s_waitcnt lgkmcnt(0)"); e("s_barrier")
    e("s_cmp_ge_u32 s62, s48"); e("s_cbranch_scc1 L_epi")

    def body(full):
        seq = [(m, 0) for m in (ORDER if full else ORDER_P)] + [(m, 1) for m in (ORDER if full else ORDER_P)]
        N = len(seq); nA = N//2
        st = Stream()
        nxt = [0]
        def issue_upto(k):
            while nxt[0] <= min(k, N-1):
                i = nxt[0]; rd(st, seq[i][0], seq[i][1], i % NF, i); nxt[0] += 1
        issue_upto(PD-NREM)
        for k in range(NREM):
            mfma(ORDER[16-NREM+k], 1, (32-NREM+k) % NF)
            issue_upto(PD-NREM+k+1)
            for t in smB[16-NREM+k]: e(t)
        check(0)
        smAl = smA if full else spread(sm_ops(1), nA)
        last = N-NREM if full else N
        for i in range(last):
            m, half = seq[i]
            if (i % 2 == 0) or not full:
                w = st.need([i, i+1] if full else [i])
                if w is not None: e(f"s_waitcnt lgkmcnt({w})")
            mfma(m, half, i % NF)
            issue_upto(i+PD+1)
            if half == 0:
                for t in smAl[i]: e(t)
                if i == nA-1: check(1)
            elif full:
                for t in smB[i-nA]: e(t)
            if full and i == N-PD-1:
                e(f"s_add_u32 s63, s63, {SLOT}"); e(f"s_cmp_eq_u32 s63, {NS*SLOT}"); e("s_cselect_b32 s63, 0, s63")
                e("s_add_u32 s62, s62, 1")
            if full and i == N-PD:
                e(f"v_add_u32 v{vKA[0]}, s63, v{vKB[0]}"); e(f"v_add_u32 v{vKA[1]}, s63, v{vKB[1]}"); e(f"v_add_u32 v{vVA}, s63, v{vVB}")
    e(".p2align 6")
    e("L_loop:")
    n0 = len(L)
    body(True)
    if drop:
        keep = []
        for t in L[n0:]:
            if 'm' in drop and t.startswith("v_mfma"): t = "s_nop 7" if 'n' in drop else None
            elif 'l' in drop and t.startswith("ds_read"): t = None
            elif 'v' in drop and (t.startswith("v_exp") or t.startswith("v_add_f32") or t.startswith("v_cvt")): t = None
            elif t.startswith("s_cbranch_vccnz"): t = None
            if t and 'h' in drop and t.startswith("ds_read"):
                import re
                r0 = int(re.search(r"v\[(\d+):", t).group(1))
                if ((r0 - vF) // 4) % 2 == 1: t = None
            if t and 'h' in drop and t.startswith("s_waitcnt lgkmcnt"): t = "s_waitcnt lgkmcnt(3)"
            if t and 'h' in drop and t.startswith("v_mfma"):
                import re
                d, a, b, c = re.findall(r"v\[(\d+):", t)
                if ((int(a) - vF) // 4) % 2 == 1: t = t.replace(R(int(a), 4), R(int(a)-4, 4))
            if t and 'x' in drop and t.startswith("v_mfma"):
                import re
                d, a, b, c = re.findall(r"v\[(\d+):", t)
                if int(b) == vQ+4: c = vNM
                cnt16[0] += 1; o = 8*(cnt16[0] & 1)
                for k in range(2):
                    keep.append(f"v_mfma_f32_16x16x32_bf16 {R(int(d)+o+4*k,4)}, {R(int(a),4)}, {R(int(b) if k == 0 else vQ+4*((cnt16[0]*3)%8),4)}, {R(int(c)+o+4*k,4)}")
                t = None
            if t: keep.append(t)
        if sleep: keep.append(f"s_sleep {sleep}")
        L[n0:] = keep
    if stamp == 2:
        e("s_waitcnt lgkmcnt(0)"); e("s_memtime s[90:91]"); e("s_waitcnt lgkmcnt(0)"); e("s_barrier")
        e("s_memtime s[92:93]"); e("s_memrealtime s[94:95]"); e("s_waitcnt lgkmcnt(0)")
        e("s_mov_b32 m0, s62"); e("s_nop 0")
        e("v_writelane_b32 v250, s90, m0"); e("v_writelane_b32 v251, s92, m0"); e("v_writelane_b32 v252, s94, m0")
        e("s_cmp_lt_u32 s62, s48")
    else:
        e("s_cmp_lt_u32 s62, s48")
        e("s_waitcnt lgkmcnt(0)"); e("s_barrier")
    e("s_cbranch_scc1 L_loop")
    e("L_epi:")
    body(False)
    if stamp: e("s_memrealtime s[84:85]")
    e(f"v_mov_b32 v{vT}, v{vL}"); e(f"v_sub_f32 v{vX}, 0, v{vNM}"); e("s_nop 0")
    e(f"v_permlane32_swap_b32 v{vL}, v{vT}")
    e(f"v_add_f32 v{vX+1}, v{vL}, v{vT}")
    e(f"v_mov_b32 v{vE[0]}, {MISC}")
    e("s_cmp_eq_u32 s66, 1"); e("s_cbranch_scc1 L_solo")
    e("s_barrier")
    e(f"ds_read_b32 v{vE[1]}, v{vE[0]}")
    e(f"v_lshlrev_b32 v{vE[2]}, 4, v1"); e(f"v_lshlrev_b32 v{vE[3]}, 3, v1")
    e("s_lshl_b32 s25, s20, 14")
    e("s_waitcnt lgkmcnt(0)")
    e(f"v_readfirstlane_b32 s67, v{vE[1]}")
    e("s_nop 3")
    e("s_cmp_eq_u32 s67, 0"); e("s_cbranch_scc0 L_owner")
    e(f"s_mul_i32 s24, s2, {PSTRIDE}"); e("s_add_u32 s25, s25, s24")
    for i in range(16):
        e(f"buffer_store_dwordx4 {R(vO+4*i,4)}, v{vE[2]}, s[28:31], s25 offen offset:{(i&3)*1024} {ppol}")
        if i & 3 == 3 and i < 15: e("s_add_u32 s25, s25, 4096")
    e("s_lshl_b32 s25, s20, 9"); e("s_add_u32 s25, s25, s24"); e("s_add_u32 s25, s25, 65536")
    e(f"buffer_store_dwordx2 {R(vX,2)}, v{vE[3]}, s[28:31], s25 offen sc1")
    e("s_waitcnt vmcnt(0)"); e("s_barrier")
    e("s_cmp_lg_u32 s20, 0"); e("s_cbranch_scc1 L_fin")
    e("s_lshl_b32 s24, s2, 7"); e(f"s_add_u32 s24, s24, {FLAGOFF}")
    e(f"v_mov_b32 v{vE[0]}, 0"); e(f"v_mov_b32 v{vE[1]}, 1")
    e("s_mov_b64 exec, 1")
    e(f"buffer_store_dword v{vE[1]}, v{vE[0]}, s[28:31], s24 offen sc1")
    e("s_mov_b64 exec, -1")
    e("s_branch L_fin")
    e("L_owner:")
    vO2 = 112
    e("s_xor_b32 s24, s2, 8"); e(f"s_mul_i32 s24, s24, {PSTRIDE}")
    e("s_lshl_b32 s67, s20, 9"); e("s_add_u32 s67, s67, s24"); e("s_add_u32 s67, s67, 65536")
    e(f"buffer_load_dwordx2 {R(vX+2,2)}, v{vE[3]}, s[28:31], s67 offen sc1")
    e("s_add_u32 s25, s25, s24")
    for i in range(16):
        e(f"buffer_load_dwordx4 {R(vO2+4*i,4)}, v{vE[2]}, s[28:31], s25 offen offset:{(i&3)*1024} sc1")
        if i & 3 == 3 and i < 15: e("s_add_u32 s25, s25, 4096")
    e("s_waitcnt vmcnt(16)")
    e(f"v_max_f32 v{vX+4}, v{vX}, v{vX+2}")
    e(f"v_sub_f32 v{vX}, v{vX}, v{vX+4}"); e(f"v_sub_f32 v{vX+2}, v{vX+2}, v{vX+4}")
    e(f"v_exp_f32 v{vX}, v{vX}"); e(f"v_exp_f32 v{vX+2}, v{vX+2}"); e("s_nop 0")
    e(f"v_mul_f32 v{vX+1}, v{vX}, v{vX+1}"); e(f"v_fmac_f32 v{vX+1}, v{vX+2}, v{vX+3}")
    e(f"v_rcp_f32 v{vX+1}, v{vX+1}"); e("s_nop 0")
    e(f"v_mul_f32 v{vX}, v{vX}, v{vX+1}"); e(f"v_mul_f32 v{vX+2}, v{vX+2}, v{vX+1}")
    for r in range(64): e(f"v_mul_f32 v{vO+r}, v{vX}, v{vO+r}")
    for i in range(16):
        e(f"s_waitcnt vmcnt({15-i})")
        for k in range(4): e(f"v_fmac_f32 v{vO+4*i+k}, v{vX+2}, v{vO2+4*i+k}")
    e("s_branch L_store")
    e("L_solo:")
    e(f"v_rcp_f32 v{vX+1}, v{vX+1}"); e("s_nop 7")
    for r in range(64): e(f"v_mul_f32 v{vO+r}, v{vX+1}, v{vO+r}")
    e("L_store:")
    e("s_lshl_b32 s24, s22, 18"); e("s_lshl_b32 s25, s21, 15"); e("s_add_u32 s24, s24, s25"); e("s_lshl_b32 s25, s20, 13"); e("s_add_u32 s24, s24, s25")
    e(f"v_and_b32 v{vE[0]}, 31, v1"); e(f"v_lshlrev_b32 v{vE[0]}, 8, v{vE[0]}"); e(f"v_lshrrev_b32 v{vE[1]}, 5, v1"); e(f"v_lshl_add_u32 v{vE[0]}, v{vE[1]}, 4, v{vE[0]}")
    for i in range(8):
        db, gp = i >> 1, i & 1
        d = vQ + 4*i; o = vO + 16*db + 8*gp
        for k in range(4): e(f"v_cvt_pk_bf16_f32 v{d+k}, v{o+2*k}, v{o+2*k+1}")
        e("s_nop 1")
        e(f"v_permlane32_swap_b32 v{d}, v{d+2}"); e(f"v_permlane32_swap_b32 v{d+1}, v{d+3}")
        e(f"buffer_store_dwordx4 {R(d,4)}, v{vE[0]}, s[40:43], s24 offen offset:{64*db+32*gp} {opol}")
    e("L_fin:")
    if enc is not None:
        T, which = enc
        e("s_waitcnt vmcnt(0)")
        e("s_memrealtime s[86:87]")
        e("s_waitcnt lgkmcnt(0)")
        e(f"s_add_u32 s90, s{which}, {T*100}")
        e("L_spin:")
        e("s_memrealtime s[92:93]"); e("s_waitcnt lgkmcnt(0)")
        e("s_sub_u32 s91, s92, s90"); e("s_cmp_lt_i32 s91, 0"); e("s_cbranch_scc1 L_spin")
        e("s_endpgm")
    if stamp:
        e("s_waitcnt vmcnt(0)")
        e("s_memrealtime s[86:87]"); e("s_getreg_b32 s88, hwreg(HW_REG_XCC_ID)")
        e("s_cmp_lg_u32 s20, 0"); e("s_cbranch_scc1 L_end")
        e("s_waitcnt lgkmcnt(0)")
        for i, r in enumerate(["s80", "s82", "s84", "s86", "s88", "s21", "s48", "s26"]): e(f"v_mov_b32 v{16+i}, {r}")
        e("s_lshl_b32 s24, s2, 5"); e(f"s_add_u32 s24, s24, {WSB-256*32}"); e("v_mov_b32 v2, 0")
        if stamp == 2:
            e("s_mul_i32 s25, s2, 768"); e(f"s_add_u32 s25, s25, {WSB-256*32-256*768}"); e("v_lshlrev_b32 v3, 2, v1")
            for i in range(3): e(f"buffer_store_dword v{250+i}, v3, s[28:31], s25 offen offset:{256*i}")
        e("s_mov_b64 exec, 1")
        e("buffer_store_dwordx4 v[16:19], v2, s[28:31], s24 offen"); e("buffer_store_dwordx4 v[20:23], v2, s[28:31], s24 offen offset:16")
    e("s_endpgm")
    for n, p in stubs:
        e(f"L_fbs{n}:"); e(f"s_call_b64 s[64:65], L_fb{p}"); e(f"s_branch L_fbr{n}")
    for p in range(2):
        S, So, P = vS[p], vS[1-p], vP[p]
        e(f"L_fb{p}:")
        e("s_nop 15"); e("s_nop 15")
        rowmax(S, vX+4, vX+5)
        e(f"v_max_f32 v{vX+4}, 0, v{vX+4}")
        e(f"v_sub_f32 v{vX+5}, 0, v{vX+4}"); e(f"v_exp_f32 v{vX+5}, v{vX+5}")
        for r in range(16): e(f"v_sub_f32 v{vNM+r}, v{vNM+r}, v{vX+4}")
        for r in range(16): e(f"v_sub_f32 v{S+r}, v{S+r}, v{vX+4}")
        for r in range(16): e(f"v_sub_f32 v{So+r}, v{So+r}, v{vX+4}")
        for r in range(64): e(f"v_mul_f32 v{vO+r}, v{vX+5}, v{vO+r}")
        e(f"v_mul_f32 v{vL}, v{vX+5}, v{vL}")
        for c, t in sm_ops(p): e(t)
        e("s_nop 1")
        e("s_setpc_b64 s[64:65]")

    e(".p2align 6")
    e("L_loader:")
    e("s_sub_u32 s20, s20, 4")
    e("s_mov_b32 s28, s10"); e("s_and_b32 s29, s11, 0xffff"); e("s_mov_b32 s30, 16384"); e("s_mov_b32 s31, 0x20000")
    e("s_lshl_b32 s24, s22, 10"); e("s_lshl_b32 s25, s20, 2"); e("s_add_u32 s24, s24, s25")
    e("v_lshlrev_b32 v3, 4, v1")
    e("buffer_load_dword v4, v3, s[28:31], s24 offen")
    e("s_mov_b32 s68, s18"); e("s_and_b32 s69, s19, 0xffff"); e(f"s_mov_b32 s70, {WSB}"); e("s_mov_b32 s71, 0x20000")
    e("v_mov_b32 v20, 0")
    e("s_mov_b32 s40, s4"); e("s_and_b32 s41, s5, 0xffff"); e(f"s_mov_b32 s42, {QB}"); e("s_mov_b32 s43, 0x20000")
    e("v_lshrrev_b32 v5, 4, v1"); e("v_and_b32 v6, 15, v1"); e("v_xor_b32 v7, v6, v5"); e("v_lshlrev_b32 v7, 4, v7")
    e("v_lshl_add_u32 v16, v5, 8, v7")
    e("s_lshl_b32 s24, s22, 18"); e("s_lshl_b32 s25, s21, 15"); e("s_add_u32 s24, s24, s25"); e("s_lshl_b32 s25, s20, 13"); e("s_add_u32 s24, s24, s25")
    e(f"s_mul_i32 s25, s20, {8*BLK}"); e(f"s_add_u32 s25, s25, {3*SLOT}")
    for j in range(8):
        e("s_mov_b32 m0, s25"); e(f"s_add_u32 s25, s25, {BLK}")
        e(f"buffer_load_dwordx4 v16, s[40:43], s24 offen {qpol} lds")
        e("s_add_u32 s24, s24, 1024")
    e("s_lshl_b32 s24, s21, 8")
    e("s_add_u32 s32, s6, s24"); e("s_addc_u32 s33, s7, 0"); e("s_and_b32 s33, s33, 0xffff"); e(f"s_sub_u32 s34, {KVB}, s24"); e("s_mov_b32 s35, 0x20000")
    e("s_add_u32 s36, s8, s24"); e("s_addc_u32 s37, s9, 0"); e("s_and_b32 s37, s37, 0xffff"); e("s_mov_b32 s38, s34"); e("s_mov_b32 s39, 0x20000")
    e("s_mov_b32 s59, s34")
    e("v_lshl_add_u32 v7, v5, 11, v7"); e("v_lshlrev_b32 v6, 4, v6"); e("v_lshl_add_u32 v6, v5, 11, v6")
    for j in range(4):
        e(f"v_add_u32 v{8+j}, {j*(8192-BLK)}, v7"); e(f"v_add_u32 v{12+j}, {j*(8192-BLK)}, v6")
    e("s_mov_b32 s44, s16"); e("s_and_b32 s45, s17, 0xffff"); e("s_mov_b32 s46, 256"); e("s_mov_b32 s47, 0x20000")
    e("s_waitcnt lgkmcnt(0)")
    piece_setup()
    e(f"s_mul_i32 s53, s20, {4*BLK}")
    e("s_mov_b32 s52, s49"); e("s_mov_b32 s54, 0")
    e("s_waitcnt vmcnt(8)")
    e("v_lshlrev_b32 v4, 15, v4")
    def nextk():
        e("s_and_b32 s24, s52, 63")
        e("v_readlane_b32 s55, v4, s24")
        e("s_lshl2_add_u32 s24, s52, s20")
        e("s_cmp_lt_u32 s54, s48"); e("s_cselect_b32 s25, s51, 0")
        e("s_cmp_lt_u32 s24, s25"); e("s_cselect_b32 s55, s55, 0"); e("s_cselect_b32 s34, s59, 0")
        e("s_add_u32 s52, s52, s50"); e("s_add_u32 s54, s54, 1")
    def dma(v0, srd, so):
        for j in range(4): e(f"buffer_load_dwordx4 v{v0+j}, {srd}, {so} offen offset:{BLK*j} {pol} lds")
    def unit():
        e("s_mov_b32 s56, s55"); e("s_mov_b32 s38, s34")
        nextk()
        e("s_mov_b32 m0, s57"); e("s_nop 0")
        dma(8, "s[32:35]", "s55")
        e(f"s_add_u32 m0, s57, {PART}"); e(f"s_add_u32 s57, s57, {SLOT}")
        dma(12, "s[36:39]", "s56")
        e(f"s_cmp_ge_u32 s57, {NS*SLOT}"); e("s_cselect_b32 s57, s53, s57")
    e("s_nop 0")
    nextk()
    e(f"s_add_u32 m0, s53, {K0OFF}"); e("s_mov_b32 s57, s53")
    dma(8, "s[32:35]", "s55")
    unit(); unit(); unit()
    e("s_lshr_b32 s24, s2, 4"); e("s_lshl_b32 s24, s24, 3"); e("s_and_b32 s25, s2, 7"); e("s_add_u32 s24, s24, s25")
    e("s_and_b32 s25, s24, 1"); e("s_lshl_b32 s58, s25, 4")
    e("s_lshr_b32 s24, s24, 1"); e("s_lshl_b32 s24, s24, 2"); e("v_mov_b32 v21, s24")
    e("s_lshl_b32 s25, 1, s58"); e("v_mov_b32 v22, s25")
    e("s_mov_b32 s62, 0")
    def ticket(tag):
        e("s_add_u32 s24, s62, 1"); e("s_cmp_lg_u32 s24, s48"); e(f"s_cbranch_scc1 L_notk{tag}")
        e("s_or_b32 s24, s20, s66"); e("s_cmp_lg_u32 s24, 0"); e(f"s_cbranch_scc1 L_notk{tag}")
        e("s_mov_b64 exec, 1")
        e("buffer_atomic_add v22, v21, s[44:47], 0 offen sc0")
        e("s_mov_b64 exec, -1")
        e(f"L_notk{tag}:")
    e("s_waitcnt vmcnt(24)"); e("s_barrier")
    e("L_lloop:")
    ticket("a")
    e("s_waitcnt vmcnt(16)"); e("s_barrier")
    e("s_add_u32 s62, s62, 1"); e("s_cmp_ge_u32 s62, s48"); e("s_cbranch_scc1 L_ldone")
    unit()
    e("s_branch L_lloop")
    e("L_ldone:")
    e("s_or_b32 s24, s20, s66"); e("s_cmp_lg_u32 s24, 0"); e("s_cbranch_scc1 L_end")
    e("s_waitcnt vmcnt(0)")
    e("v_readfirstlane_b32 s24, v22"); e("s_nop 3")
    e("s_lshr_b32 s24, s24, s58"); e("s_and_b32 s67, s24, 1")
    e("s_cmp_eq_u32 s67, 0"); e("s_cbranch_scc1 L_role")
    e("s_xor_b32 s24, s2, 8"); e("s_lshl_b32 s24, s24, 7"); e(f"s_add_u32 s24, s24, {FLAGOFF}")
    e("s_mov_b64 exec, 1")
    e("s_mov_b32 s72, 0x40000")
    e("L_poll:")
    e("s_sub_u32 s72, s72, 1"); e("s_cbranch_scc1 L_pollx")
    e("buffer_load_dword v23, v20, s[68:71], s24 offen sc1")
    e("s_waitcnt vmcnt(0)")
    e("v_readfirstlane_b32 s25, v23"); e("s_nop 3")
    e("s_cmp_eq_u32 s25, 1"); e("s_cbranch_scc0 L_poll")
    e("L_pollx:")
    e("s_mov_b64 exec, -1")
    e("L_role:")
    e(f"v_mov_b32 v23, s67"); e(f"v_mov_b32 v24, {MISC}")
    e("ds_write_b32 v24, v23"); e("s_waitcnt lgkmcnt(0)"); e("s_barrier")
    e("L_end:"); e("s_endpgm")
    e('.section .rodata,"a"'); e(".p2align 6"); e(f".amdhsa_kernel {KN}")
    e("  .amdhsa_next_free_vgpr 256"); e("  .amdhsa_next_free_sgpr 102"); e("  .amdhsa_accum_offset 256"); e("  .amdhsa_group_segment_fixed_size 0")
    e("  .amdhsa_kernarg_size 64"); e("  .amdhsa_user_sgpr_count 2"); e("  .amdhsa_user_sgpr_kernarg_segment_ptr 1"); e("  .amdhsa_system_sgpr_workgroup_id_x 1")
    e(".end_amdhsa_kernel")
    return "\n".join(L) + "\n"
if __name__ == "__main__":
    from build import build
    specs = []
    for name, kw in eval(sys.argv[1]).items():
        open(name + ".s", "w").write(gen(**kw))
        specs.append(build(name + ".s"))
    print(" ".join(specs))
```

```python
import sys, math, struct, re
KN = "standalone__paged_block_table_kv_pagedattention__sampling_kernel"
WSB = 537395200
KVB = 4100*32768
QB = 16*32*32*128*2
BLK = 1088
PART = 16*BLK
SLOT = 2*PART
NS = 3
QOFF = NS*SLOT
K0OFF = QOFF + SLOT
MISC = K0OFF + PART
LDS = MISC + 256
PSTRIDE = 36864
FLAGOFF = 32 << 20

def f2u(x): return struct.unpack("<I", struct.pack("<f", x))[0]
HEADER = open("standalone__paged_block_table_kv_pagedattention__sampling.s.ref").read().split("; Override")[0]

vKA = [2, 3]; vVA = 4; vKB = [5, 6]; vVB = 7; vL = 8; vT = 9; vE = [10, 11, 12, 13, 14, 15]
vQ = 16; vO = 48; vS = [112, 128]; vNM = 144; vP = [160, 168]; vF = 176; NF = 8; vX = 208; vH = 216
def R(b, n): return f"v[{b}:{b+n-1}]"

def gen(pol="nt", qpol="nt", delta=0, hx=0, stamp=0, PD=5, thr=1024.0, opol="", prio=0, enc=None, drop='',
        WA=20.0, WC=1.0, WMIN=10, WMAX=32, WEND=32, NEND=None, wfix=None):
    if NEND is None: NEND = delta
    L = []
    e = L.append
    def st3(v, i):
        if stamp == 3:
            e("s_memrealtime s[100:101]"); e("s_waitcnt lgkmcnt(0)"); e(f"v_writelane_b32 v{v}, s100, {i}")
    e(HEADER.rstrip())
    e(f"; @launch grid=(256,1,1) block=(448,1,1) lds={LDS}")
    e('.amdgcn_target "amdgcn-amd-amdhsa--gfx950"')
    e(".text"); e(f".globl {KN}"); e(".p2align 8"); e(f".type {KN},@function"); e(f"{KN}:")
    e("s_cmp_ge_u32 s2, 256"); e("s_cbranch_scc1 L_end")
    e("s_load_dwordx16 s[4:19], s[0:1], 0")
    if stamp: e("s_memrealtime s[80:81]")
    e("v_lshrrev_b32 v2, 6, v0"); e("v_and_b32 v1, 63, v0")
    e("s_and_b32 s21, s2, 7")
    e("v_readfirstlane_b32 s20, v2")
    if hx: e(f"s_xor_b32 s21, s21, {hx}")
    e("s_lshr_b32 s22, s2, 4"); e("s_bfe_u32 s23, s2, 0x10003")
    e("s_lshl_b32 s24, s22, 2")
    e("s_cmp_ge_u32 s20, 4")
    e("s_waitcnt lgkmcnt(0)")
    if stamp == 3:
        e("v_mov_b32 v250, 0"); e("v_writelane_b32 v250, s80, 0"); st3(250, 1)
    e("s_load_dword s26, s[12:13], s24")
    e("s_cbranch_scc1 L_aux")

    def piece_setup():
        c = math.log2(math.e) / math.sqrt(128.0)
        e("s_cmp_gt_i32 s26, 0"); e(f"s_cselect_b32 s60, {hex(f2u(c))}, 0"); e("s_cselect_b32 s26, s26, 0x1000")
        e("s_min_u32 s26, s26, 0x1000")
        e("s_add_u32 s27, s26, 63"); e("s_lshr_b32 s27, s27, 6")
        e("s_add_u32 s51, s26, 15"); e("s_lshr_b32 s51, s51, 4")
        e(f"s_sub_i32 s24, s27, {delta}"); e("s_max_i32 s24, s24, 0"); e("s_lshr_b32 s24, s24, 1")
        e("s_cmp_eq_u32 s24, 0"); e("s_cselect_b32 s66, 1, 0")
        e("s_sub_u32 s25, s27, s24")
        e("s_sub_u32 s49, s27, 1")
        e("s_cmp_eq_u32 s23, 0")
        e("s_cselect_b32 s48, s24, s25"); e("s_cselect_b32 s49, 0, s49"); e("s_cselect_b32 s50, 1, -1")
        e("s_cmp_eq_u32 s48, 0"); e("s_cbranch_scc1 L_end")

    e("v_and_b32 v10, 31, v1"); e("v_lshrrev_b32 v11, 5, v1")
    e("v_and_b32 v12, 3, v10"); e("v_lshrrev_b32 v13, 4, v10"); e("v_lshl_add_u32 v12, v13, 2, v12")
    e("v_bfe_u32 v13, v10, 2, 2")
    e(f"v_mul_u32_u24 v12, {BLK}, v12"); e("v_lshl_add_u32 v12, v13, 8, v12")
    e("v_xor_b32 v14, v11, v13"); e(f"v_lshl_add_u32 v{vKB[0]}, v14, 4, v12")
    e("v_xor_b32 v14, 2, v14"); e(f"v_lshl_add_u32 v{vKB[1]}, v14, 4, v12")
    e("v_bfe_u32 v12, v1, 2, 2"); e(f"v_mul_u32_u24 v12, {BLK}, v12"); e("v_lshl_add_u32 v12, v11, 8, v12")
    e("v_bfe_u32 v13, v1, 4, 1"); e("v_lshl_add_u32 v12, v13, 5, v12")
    e("v_and_b32 v13, 3, v1"); e("v_lshl_add_u32 v12, v13, 3, v12"); e(f"v_add_u32 v{vVB}, {PART}, v12")
    e("v_lshrrev_b32 v12, 2, v10"); e("s_lshl_b32 s24, s20, 3"); e("v_add_u32 v12, s24, v12"); e(f"v_mul_u32_u24 v12, {BLK}, v12")
    e("v_and_b32 v13, 3, v10"); e("v_lshl_add_u32 v12, v13, 8, v12"); e(f"v_add_u32 v12, {QOFF}, v12")
    e("v_xor_b32 v14, v11, v13"); e(f"v_lshl_add_u32 v{vX}, v14, 4, v12")
    e("v_xor_b32 v14, 2, v14"); e(f"v_lshl_add_u32 v{vX+1}, v14, 4, v12")
    e(f"v_add_u32 v{vKA[0]}, {K0OFF}, v{vKB[0]}"); e(f"v_add_u32 v{vKA[1]}, {K0OFF}, v{vKB[1]}")
    e(f"v_mov_b32 v{vVA}, v{vVB}")
    for r in range(vO, vO+64): e(f"v_mov_b32 v{r}, 0")
    for r in range(vP[1], vP[1]+8): e(f"v_mov_b32 v{r}, 0")
    e(f"v_mov_b32 v{vL}, 0")
    if stamp == 2:
        for i in range(3): e(f"v_mov_b32 v{250+i}, 0")
    e(f"s_mov_b32 s61, {hex(f2u(thr))}")
    e("s_mov_b32 s28, s18"); e("s_and_b32 s29, s19, 0xffff"); e(f"s_mov_b32 s30, {WSB}"); e("s_mov_b32 s31, 0x20000")
    e("s_mov_b32 s40, s14"); e("s_and_b32 s41, s15, 0xffff"); e(f"s_mov_b32 s42, {QB}"); e("s_mov_b32 s43, 0x20000")
    e("s_waitcnt lgkmcnt(0)")
    piece_setup()
    if prio: e(f"s_setprio {prio}")
    e("s_lshl_b32 s24, s49, 6"); e("s_sub_u32 s54, s26, s24"); e(f"v_sub_u32 v{vX+2}, s54, v11")
    e(f"v_mov_b32 v{vX+3}, 0xff800000")
    e("s_mov_b32 s63, 0")
    st3(250, 2)
    e("s_barrier")
    st3(250, 3)
    for s in range(8):
        e(f"ds_read_b128 {R(vQ+4*s,4)}, v{vX+(s&1)} offset:{(s>>1)*64}")
    def kread(buf, kb, s): e(f"ds_read_b128 {R(vF+4*buf,4)}, v{vKA[s&1]} offset:{(s>>1)*64 + kb*8*BLK}")
    def vread(buf, s, db):
        for i in range(2): e(f"ds_read_b64_tr_b16 {R(vF+4*buf+2*i,2)}, v{vVA} offset:{s*4*BLK + i*512 + 64*db}")
    for s in range(8):
        e(f"s_waitcnt lgkmcnt({7-s})")
        for k in range(4):
            r = vQ+4*s+k; a, b2 = vE[(2*k) % 6], vE[(2*k+1) % 6]
            e(f"v_lshlrev_b32 v{a}, 16, v{r}"); e(f"v_and_b32 v{b2}, 0xffff0000, v{r}")
            e(f"v_mul_f32 v{a}, s60, v{a}"); e(f"v_mul_f32 v{b2}, s60, v{b2}")
            e(f"v_cvt_pk_bf16_f32 v{r}, v{a}, v{b2}")
    st3(250, 4)
    e("s_barrier")
    st3(250, 5)
    if stamp: e("s_memrealtime s[82:83]"); e("s_waitcnt lgkmcnt(0)")
    for s in range(8): kread(s, 0, s)
    for i in range(16):
        kb, s = i >> 3, i & 7
        w = (7-i) + max(0, i-1) if i < 8 else (6 if i == 8 else 15-i)
        e(f"s_waitcnt lgkmcnt({w})")
        c = "0" if s == 0 else R(vS[kb], 16)
        e(f"v_mfma_f32_32x32x16_bf16 {R(vS[kb],16)}, {R(vF+4*(i&7),4)}, {R(vQ+4*s,4)}, {c}")
        if 1 <= i <= 8: kread(i-1, 1, i-1)
    e(f"v_mov_b32 v{vKA[0]}, v{vKB[0]}"); e(f"v_mov_b32 v{vKA[1]}, v{vKB[1]}")
    def tau(kb, r): return 32*kb + 4*(r & 3) + 2*((r >> 2) & 1) + 16*(r >> 3)
    e("s_cmp_lt_u32 s54, 64"); e("s_cbranch_scc1 L_mask")
    e("L_maskr:")
    def rowmax(S, d, t):
        e(f"v_max3_f32 v{d}, v{S}, v{S+1}, v{S+2}")
        for r in range(3, 15, 2): e(f"v_max3_f32 v{d}, v{d}, v{S+r}, v{S+r+1}")
        e(f"v_max_f32 v{d}, v{d}, v{S+15}")
        e(f"v_mov_b32 v{t}, v{d}"); e("s_nop 1")
        e(f"v_permlane32_swap_b32 v{d}, v{t}")
        e(f"v_max_f32 v{d}, v{d}, v{t}")
    rowmax(vS[0], vX+4, vX+5)
    for kb in range(2):
        for r in range(16): e(f"v_sub_f32 v{vS[kb]+r}, v{vS[kb]+r}, v{vX+4}")
    for r in range(16): e(f"v_sub_f32 v{vNM+r}, 0, v{vX+4}")
    NREM = 3
    for b in range(8-NREM, 8):
        for r in range(4): e(f"v_mov_b32 v{vF+4*b+r}, 0")

    ORDER = [('Q',0),('Q',1),('Q',2),('P',0,0),('Q',3),('P',0,1),('Q',4),('P',0,2),('Q',5),('P',0,3),('Q',6),('P',1,0),('Q',7),('P',1,1),('P',1,2),('P',1,3)]
    ORDER_P = [('P',a,b) for a in range(2) for b in range(4)]
    def sm_ops(p):
        S, P = vS[p], vP[p]
        ops = []
        E = vE
        def ex(r): ops.append((8, f"v_exp_f32 v{E[r % 6]}, v{S+r}"))
        def fin(k):
            a, b = E[(2*k) % 6], E[(2*k+1) % 6]
            if k == 0: ops.append((4, f"v_add_f32 v{vT}, v{a}, v{b}"))
            else:
                ops.append((4, f"v_add_f32 v{vT}, v{vT}, v{a}")); ops.append((4, f"v_add_f32 v{vT}, v{vT}, v{b}"))
            ops.append((4, f"v_cvt_pk_bf16_f32 v{P+k}, v{a}, v{b}"))
        ex(0); ex(1); ex(2)
        for k in range(8):
            if 2*k+3 < 16: ex(2*k+3)
            fin(k)
            if 2*k+4 < 16: ex(2*k+4)
        return ops
    fbn = [0]
    stubs = []
    def check(p):
        fbn[0] += 1; n = fbn[0]
        e(f"v_cmp_nge_f32 vcc, s61, v{vT}")
        e(f"s_cbranch_vccnz L_fbs{n}")
        e(f"L_fbr{n}:")
        e(f"v_add_f32 v{vL}, v{vL}, v{vT}")
        stubs.append((n, p))
    class Stream:
        def __init__(s): s.q = []
        def read(s, tag, n): s.q += [tag]*n
        def need(s, tags):
            idx = max([i for i, t in enumerate(s.q) if t in tags], default=-1)
            if idx < 0: return None
            n = len(s.q) - 1 - idx
            s.q = s.q[idx+1:]
            return n
    def mfma(m, half, buf):
        if m[0] == 'Q':
            s = m[1]; S = vS[half]
            c = R(vNM, 16) if s == 0 else R(S, 16)
            e(f"v_mfma_f32_32x32x16_bf16 {R(S,16)}, {R(vF+4*buf,4)}, {R(vQ+4*s,4)}, {c}")
        else:
            sp, db = m[1], m[2]
            e(f"v_mfma_f32_32x32x16_bf16 {R(vO+16*db,16)}, {R(vF+4*buf,4)}, {R(vP[half]+4*sp,4)}, {R(vO+16*db,16)}")
    def rd(st, m, half, buf, tag):
        if m[0] == 'Q': kread(buf, half, m[1]); st.read(tag, 1)
        else: vread(buf, 2*half+m[1], m[2]); st.read(tag, 2)
    def spread(ops, ngaps):
        tot = sum(c for c, _ in ops); out = [[] for _ in range(ngaps)]; acc = 0
        for c, t in ops:
            g = min(ngaps-1, int((acc + c/2) * ngaps / tot)); out[g].append(t); acc += c
        return out
    smA = spread(sm_ops(1), 16); smB = spread(sm_ops(0), 16)
    for g in range(16-NREM):
        for t in smB[g]: e(t)
    e("s_mov_b32 s62, 1")
    st3(250, 6)
    e("s_waitcnt lgkmcnt(0)"); e("s_barrier")
    st3(250, 7)
    e("s_cmp_ge_u32 s62, s48"); e("s_cbranch_scc1 L_epi")

    def body(full):
        seq = [(m, 0) for m in (ORDER if full else ORDER_P)] + [(m, 1) for m in (ORDER if full else ORDER_P)]
        N = len(seq); nA = N//2
        st = Stream()
        nxt = [0]
        def issue_upto(k):
            while nxt[0] <= min(k, N-1):
                i = nxt[0]; rd(st, seq[i][0], seq[i][1], i % NF, i); nxt[0] += 1
        issue_upto(PD-NREM)
        for k in range(NREM):
            mfma(ORDER[16-NREM+k], 1, (32-NREM+k) % NF)
            issue_upto(PD-NREM+k+1)
            for t in smB[16-NREM+k]: e(t)
        check(0)
        smAl = smA if full else spread(sm_ops(1), nA)
        last = N-NREM if full else N
        for i in range(last):
            m, half = seq[i]
            if (i % 2 == 0) or not full:
                w = st.need([i, i+1] if full else [i])
                if w is not None: e(f"s_waitcnt lgkmcnt({w})")
            mfma(m, half, i % NF)
            issue_upto(i+PD+1)
            if half == 0:
                for t in smAl[i]: e(t)
                if i == nA-1: check(1)
            elif full:
                for t in smB[i-nA]: e(t)
            if full and i == N-PD-1:
                e(f"s_add_u32 s63, s63, {SLOT}"); e(f"s_cmp_eq_u32 s63, {NS*SLOT}"); e("s_cselect_b32 s63, 0, s63")
                e("s_add_u32 s62, s62, 1")
            if full and i == N-PD:
                e(f"v_add_u32 v{vKA[0]}, s63, v{vKB[0]}"); e(f"v_add_u32 v{vKA[1]}, s63, v{vKB[1]}"); e(f"v_add_u32 v{vVA}, s63, v{vVB}")
    e(".p2align 6")
    e("L_loop:")
    n0 = len(L)
    body(True)
    if drop:
        keep = []
        for t in L[n0:]:
            if 'm' in drop and t.startswith("v_mfma"): t = None
            elif 'l' in drop and t.startswith("ds_read"): t = None
            elif 'v' in drop and (t.startswith("v_exp") or t.startswith("v_add_f32") or t.startswith("v_cvt")): t = None
            elif t.startswith("s_cbranch_vccnz"): t = None
            if t: keep.append(t)
        L[n0:] = keep
    if stamp == 2:
        e("s_waitcnt lgkmcnt(0)"); e("s_memtime s[90:91]"); e("s_waitcnt lgkmcnt(0)"); e("s_barrier")
        e("s_memtime s[92:93]"); e("s_memrealtime s[94:95]"); e("s_waitcnt lgkmcnt(0)")
        e("s_mov_b32 m0, s62"); e("s_nop 0")
        e("v_writelane_b32 v250, s90, m0"); e("v_writelane_b32 v251, s92, m0"); e("v_writelane_b32 v252, s94, m0")
        e("s_cmp_lt_u32 s62, s48")
    else:
        e("s_cmp_lt_u32 s62, s48")
        e("s_waitcnt lgkmcnt(0)"); e("s_barrier")
    e("s_cbranch_scc1 L_loop")
    e("L_epi:")
    st3(250, 8)
    e(f"v_mov_b32 v{vX}, {MISC}")
    e(f"ds_read_b32 v{vX+1}, v{vX}")
    e(f"v_lshlrev_b32 v{vX+6}, 4, v1"); e(f"v_lshlrev_b32 v{vX+7}, 3, v1")
    e("s_xor_b32 s24, s2, 8"); e(f"s_mul_i32 s24, s24, {PSTRIDE}")
    e("s_lshl_b32 s25, s20, 13"); e("s_add_u32 s56, s25, s24")
    e("s_lshl_b32 s25, s20, 9"); e("s_add_u32 s57, s25, s24"); e("s_add_u32 s57, s57, 32768")
    e("s_add_u32 s58, s56, 4096")
    e("s_waitcnt lgkmcnt(0)")
    e(f"v_readfirstlane_b32 s67, v{vX+1}")
    e("s_nop 3")
    def pload():
        e(f"buffer_load_dwordx2 {R(vX+2,2)}, v{vX+7}, s[28:31], s57 offen sc1")
        for i in range(8):
            e(f"buffer_load_dwordx4 {R(vH+4*i,4)}, v{vX+6}, s[28:31], s{56 if i < 4 else 58} offen offset:{(i&3)*1024} sc1")
    e("s_cmp_lg_u32 s67, 3"); e("s_cbranch_scc1 L_nopre")
    pload()
    e("L_nopre:")
    st3(250, 9)
    body(False)
    st3(250, 10)
    if stamp: e("s_memrealtime s[84:85]")
    e(f"v_mov_b32 v{vT}, v{vL}"); e(f"v_sub_f32 v{vX}, 0, v{vNM}"); e("s_nop 0")
    e(f"v_permlane32_swap_b32 v{vL}, v{vT}")
    e(f"v_add_f32 v{vX+1}, v{vL}, v{vT}")
    e("s_cmp_eq_u32 s67, 3"); e("s_cbranch_scc1 L_owner")
    e("s_cmp_eq_u32 s66, 1"); e("s_cbranch_scc1 L_solo")
    e("s_cmp_eq_u32 s67, 1"); e("s_cbranch_scc1 L_helper")
    e(f"v_mov_b32 v{vE[0]}, {MISC+4}")
    e("s_barrier")
    e(f"ds_read_b32 v{vE[1]}, v{vE[0]}")
    e("s_waitcnt lgkmcnt(0)")
    e(f"v_readfirstlane_b32 s67, v{vE[1]}")
    e("s_nop 3")
    e("s_cmp_eq_u32 s67, 1"); e("s_cbranch_scc1 L_helper")
    pload()
    e("L_owner:")
    e("s_waitcnt vmcnt(8)")
    e(f"v_max_f32 v{vX+4}, v{vX}, v{vX+2}")
    e(f"v_sub_f32 v{vX}, v{vX}, v{vX+4}"); e(f"v_sub_f32 v{vX+2}, v{vX+2}, v{vX+4}")
    e(f"v_exp_f32 v{vX}, v{vX}"); e(f"v_exp_f32 v{vX+2}, v{vX+2}"); e("s_nop 0")
    e(f"v_mul_f32 v{vX+1}, v{vX}, v{vX+1}"); e(f"v_fmac_f32 v{vX+1}, v{vX+2}, v{vX+3}")
    e(f"v_rcp_f32 v{vX+1}, v{vX+1}"); e("s_nop 0")
    e(f"v_mul_f32 v{vX}, v{vX}, v{vX+1}"); e(f"v_mul_f32 v{vX+2}, v{vX+2}, v{vX+1}")
    def outaddr():
        e("s_lshl_b32 s24, s22, 18"); e("s_lshl_b32 s25, s21, 15"); e("s_add_u32 s24, s24, s25"); e("s_lshl_b32 s25, s20, 13"); e("s_add_u32 s24, s24, s25")
        e(f"v_and_b32 v{vE[0]}, 31, v1"); e(f"v_lshlrev_b32 v{vE[0]}, 8, v{vE[0]}"); e(f"v_lshrrev_b32 v{vE[1]}, 5, v1"); e(f"v_lshl_add_u32 v{vE[0]}, v{vE[1]}, 4, v{vE[0]}")
    def outstore(i):
        db, gp = i >> 1, i & 1
        d = vQ + 4*i; o = vO + 16*db + 8*gp
        for k in range(4): e(f"v_cvt_pk_bf16_f32 v{d+k}, v{o+2*k}, v{o+2*k+1}")
        e("s_nop 1")
        e(f"v_permlane32_swap_b32 v{d}, v{d+2}"); e(f"v_permlane32_swap_b32 v{d+1}, v{d+3}")
        e(f"buffer_store_dwordx4 {R(d,4)}, v{vE[0]}, s[40:43], s24 offen offset:{64*db+32*gp} {opol}")
    outaddr()
    for i in range(8):
        o = vO + 8*i
        for k in range(4): e(f"v_pk_mul_f32 {R(o+2*k,2)}, {R(o+2*k,2)}, {R(vX,2)} op_sel_hi:[1,0]")
        e(f"s_waitcnt vmcnt({7})")
        for k in range(4):
            a = vS[0] + 2*k
            e(f"v_lshlrev_b32 v{a}, 16, v{vH+4*i+k}"); e(f"v_and_b32 v{a+1}, 0xffff0000, v{vH+4*i+k}")
        for k in range(4):
            a = vS[0] + 2*k
            e(f"v_pk_fma_f32 {R(o+2*k,2)}, {R(a,2)}, {R(vX+2,2)}, {R(o+2*k,2)} op_sel_hi:[1,0,1]")
        outstore(i)
    e("s_branch L_fin")
    e("L_solo:")
    e(f"v_rcp_f32 v{vX}, v{vX+1}")
    outaddr()
    for i in range(8):
        o = vO + 8*i
        for k in range(4): e(f"v_pk_mul_f32 {R(o+2*k,2)}, {R(o+2*k,2)}, {R(vX,2)} op_sel_hi:[1,0]")
        outstore(i)
    e("s_branch L_fin")
    e("L_helper:")
    e(f"s_mul_i32 s24, s2, {PSTRIDE}"); e("s_lshl_b32 s25, s20, 13"); e("s_add_u32 s56, s25, s24"); e("s_add_u32 s58, s56, 4096")
    e("s_lshl_b32 s25, s20, 9"); e("s_add_u32 s57, s25, s24"); e("s_add_u32 s57, s57, 32768")
    e(f"buffer_store_dwordx2 {R(vX,2)}, v{vX+7}, s[28:31], s57 offen sc1")
    for i in range(8):
        for k in range(4): e(f"v_cvt_pk_bf16_f32 v{vH+4*i+k}, v{vO+8*i+2*k}, v{vO+8*i+2*k+1}")
        e(f"buffer_store_dwordx4 {R(vH+4*i,4)}, v{vX+6}, s[28:31], s{56 if i < 4 else 58} offen offset:{(i&3)*1024} sc1")
    e("s_waitcnt vmcnt(0)"); e("s_barrier")
    e("s_cmp_lg_u32 s20, 0"); e("s_cbranch_scc1 L_fin")
    e("s_lshl_b32 s24, s2, 7"); e(f"s_add_u32 s24, s24, {FLAGOFF}")
    e(f"v_mov_b32 v{vE[0]}, 0"); e(f"v_mov_b32 v{vE[1]}, 1")
    e("s_mov_b64 exec, 1")
    e(f"buffer_store_dword v{vE[1]}, v{vE[0]}, s[28:31], s24 offen sc1")
    e("s_mov_b64 exec, -1")
    e("L_fin:")
    st3(250, 11)
    if enc is not None:
        T, which = enc
        e("s_waitcnt vmcnt(0)")
        e("s_memrealtime s[86:87]")
        e("s_waitcnt lgkmcnt(0)")
        e(f"s_add_u32 s90, s{which}, {T*100}")
        e("L_spin:")
        e("s_memrealtime s[92:93]"); e("s_waitcnt lgkmcnt(0)")
        e("s_sub_u32 s91, s92, s90"); e("s_cmp_lt_i32 s91, 0"); e("s_cbranch_scc1 L_spin")
        e("s_endpgm")
    if stamp:
        e("s_waitcnt vmcnt(0)")
        e("s_memrealtime s[86:87]"); e("s_getreg_b32 s88, hwreg(HW_REG_XCC_ID)")
        e("s_cmp_lg_u32 s20, 0"); e("s_cbranch_scc1 L_end")
        e("s_waitcnt lgkmcnt(0)")
        e("s_lshl_b32 s67, s67, 8"); e("s_or_b32 s88, s88, s67")
        for i, r in enumerate(["s80", "s82", "s84", "s86", "s88", "s21", "s48", "s26"]): e(f"v_mov_b32 v{16+i}, {r}")
        e("s_lshl_b32 s24, s2, 5"); e(f"s_add_u32 s24, s24, {WSB-256*32}"); e("v_mov_b32 v2, 0")
        if stamp == 3:
            e("v_writelane_b32 v250, s86, 12")
            e("s_mul_i32 s25, s2, 768"); e(f"s_add_u32 s25, s25, {WSB-256*32-256*768}"); e("v_lshlrev_b32 v3, 2, v1")
            e(f"buffer_store_dword v250, v3, s[28:31], s25 offen")
        if stamp == 2:
            e("s_mul_i32 s25, s2, 768"); e(f"s_add_u32 s25, s25, {WSB-256*32-256*768}"); e("v_lshlrev_b32 v3, 2, v1")
            for i in range(3): e(f"buffer_store_dword v{250+i}, v3, s[28:31], s25 offen offset:{256*i}")
        e("s_mov_b64 exec, 1")
        e("buffer_store_dwordx4 v[16:19], v2, s[28:31], s24 offen"); e("buffer_store_dwordx4 v[20:23], v2, s[28:31], s24 offen offset:16")
    e("s_endpgm")
    e("L_mask:")
    e("s_nop 7")
    for kb in range(2):
        for r in range(16):
            e(f"v_cmp_lt_i32 vcc, {tau(kb, r)}, v{vX+2}"); e("s_nop 1")
            e(f"v_cndmask_b32 v{vS[kb]+r}, v{vX+3}, v{vS[kb]+r}, vcc")
    e("s_branch L_maskr")
    for n, p in stubs:
        e(f"L_fbs{n}:"); e(f"s_call_b64 s[64:65], L_fb{p}"); e(f"s_branch L_fbr{n}")
    for p in range(2):
        S, So, P = vS[p], vS[1-p], vP[p]
        e(f"L_fb{p}:")
        e("s_nop 15"); e("s_nop 15")
        rowmax(S, vX+4, vX+5)
        e(f"v_max_f32 v{vX+4}, 0, v{vX+4}")
        e(f"v_sub_f32 v{vX+5}, 0, v{vX+4}"); e(f"v_exp_f32 v{vX+5}, v{vX+5}")
        for r in range(16): e(f"v_sub_f32 v{vNM+r}, v{vNM+r}, v{vX+4}")
        for r in range(16): e(f"v_sub_f32 v{S+r}, v{S+r}, v{vX+4}")
        for r in range(16): e(f"v_sub_f32 v{So+r}, v{So+r}, v{vX+4}")
        for r in range(64): e(f"v_mul_f32 v{vO+r}, v{vX+5}, v{vO+r}")
        e(f"v_mul_f32 v{vL}, v{vX+5}, v{vL}")
        for c, t in sm_ops(p): e(t)
        e("s_nop 1")
        e("s_setpc_b64 s[64:65]")

    e(".p2align 6")
    e("L_aux:")
    e("s_cmp_eq_u32 s20, 6"); e("s_cbranch_scc1 L_sync")
    e("s_sub_u32 s20, s20, 4")
    e("s_mov_b32 s28, s10"); e("s_and_b32 s29, s11, 0xffff"); e("s_mov_b32 s30, 16384"); e("s_mov_b32 s31, 0x20000")
    e("s_lshl_b32 s24, s22, 10"); e("s_lshl_b32 s25, s20, 3"); e("s_add_u32 s24, s24, s25")
    e("v_lshlrev_b32 v3, 4, v1")
    e("buffer_load_dwordx2 v[4:5], v3, s[28:31], s24 offen")
    e("s_load_dwordx16 s[84:99], s[12:13], 0")
    e("s_mov_b32 s40, s4"); e("s_and_b32 s41, s5, 0xffff"); e(f"s_mov_b32 s42, {QB}"); e("s_mov_b32 s43, 0x20000")
    e("v_lshrrev_b32 v17, 4, v1"); e("v_and_b32 v6, 15, v1"); e("v_xor_b32 v7, v6, v17"); e("v_lshlrev_b32 v7, 4, v7")
    e("v_lshl_add_u32 v16, v17, 8, v7")
    e("s_lshl_b32 s24, s22, 18"); e("s_lshl_b32 s25, s21, 15"); e("s_add_u32 s24, s24, s25"); e("s_lshl_b32 s25, s20, 14"); e("s_add_u32 s24, s24, s25")
    e(f"s_mul_i32 s25, s20, {16*BLK}"); e(f"s_add_u32 s25, s25, {QOFF}")
    for j in range(16):
        e("s_mov_b32 m0, s25"); e(f"s_add_u32 s25, s25, {BLK}")
        e(f"buffer_load_dwordx4 v16, s[40:43], s24 offen {qpol} lds")
        e("s_add_u32 s24, s24, 1024")
    st3(250, 2)
    e("s_lshl_b32 s24, s21, 8")
    e("s_add_u32 s32, s6, s24"); e("s_addc_u32 s33, s7, 0"); e("s_and_b32 s33, s33, 0xffff"); e(f"s_sub_u32 s34, {KVB}, s24"); e("s_mov_b32 s35, 0x20000")
    e("s_add_u32 s36, s8, s24"); e("s_addc_u32 s37, s9, 0"); e("s_and_b32 s37, s37, 0xffff"); e("s_mov_b32 s38, s34"); e("s_mov_b32 s39, 0x20000")
    e("s_mov_b32 s59, s34")
    e("v_lshl_add_u32 v7, v17, 11, v7"); e("v_lshlrev_b32 v6, 4, v6"); e("v_lshl_add_u32 v6, v17, 11, v6")
    for j in range(4):
        e(f"v_add_u32 v{8+j}, {j*(8192-BLK)}, v7"); e(f"v_add_u32 v{12+j}, {j*(8192-BLK)}, v6")
    e("s_waitcnt lgkmcnt(0)")
    piece_setup()
    e(f"s_mul_i32 s53, s20, {8*BLK}")
    e("s_mov_b32 s52, s49"); e("s_mov_b32 s54, 0")
    e("s_lshl_b32 s73, s20, 1")
    st3(250, 3)
    e("s_waitcnt vmcnt(16)")
    st3(250, 4)
    e("v_lshlrev_b32 v4, 15, v4"); e("v_lshlrev_b32 v5, 15, v5")
    def nextk():
        e("s_and_b32 s24, s52, 63")
        e("v_readlane_b32 s44, v4, s24"); e("v_readlane_b32 s45, v5, s24")
        e("s_lshl2_add_u32 s24, s52, s73")
        e("s_cmp_lt_u32 s54, s48"); e("s_cselect_b32 s25, s51, 0")
        e("s_cmp_lt_u32 s24, s25"); e("s_cselect_b32 s44, s44, 0"); e("s_cselect_b32 s46, s59, 0")
        e("s_add_u32 s24, s24, 1")
        e("s_cmp_lt_u32 s24, s25"); e("s_cselect_b32 s45, s45, 0"); e("s_cselect_b32 s47, s59, 0")
        e("s_add_u32 s52, s52, s50"); e("s_add_u32 s54, s54, 1")
    def dma16(pre, kbase, which=range(16)):
        for j in which:
            g = j >> 2
            if j & 3 == 0:
                off = (g & 1)*4*BLK + (g >> 1)*PART
                e(f"s_add_u32 m0, {kbase}, {off}")
                e(f"s_mov_b32 s{34 if g < 2 else 38}, s{[46, 47, 74, 75][g]}")
            pre(j)
            v = (8 if g < 2 else 12) + (j & 3)
            e(f"buffer_load_dwordx4 v{v}, {'s[32:35]' if g < 2 else 's[36:39]'}, s{[44, 45, 55, 56][g]} offen offset:{BLK*(j&3)} {pol} lds")
    def unit_pre():
        e("s_mov_b32 s55, s44"); e("s_mov_b32 s56, s45"); e("s_mov_b32 s74, s46"); e("s_mov_b32 s75, s47")
        nextk()
    def unit_post():
        e(f"s_add_u32 s57, s57, {SLOT}"); e(f"s_cmp_ge_u32 s57, {NS*SLOT}"); e("s_cselect_b32 s57, s53, s57")
    nextk()
    e(f"s_add_u32 s57, s53, {K0OFF}")
    dma16(lambda j: None, "s57", range(8))
    e("s_mov_b32 s57, s53")
    unit_pre()
    dma16(lambda j: None, "s57", range(8))
    st3(250, 5)
    if wfix is None:
        e("s_mov_b32 s76, 0")
        for i in range(16):
            r = 84+i
            e(f"s_cmp_gt_i32 s{r}, 0"); e(f"s_cselect_b32 s{r}, s{r}, 0x1000"); e(f"s_min_u32 s{r}, s{r}, 0x1000"); e(f"s_add_u32 s76, s76, s{r}")
        c = int(64*(delta + 2*WC))
        e("s_lshr_b32 s76, s76, 4"); e(f"s_sub_i32 s76, s76, {c}"); e("s_max_i32 s76, s76, 64")
        e(f"s_sub_i32 s24, s26, {c}"); e("s_max_i32 s24, s24, 0")
        e("v_cvt_f32_u32 v20, s76"); e("v_cvt_f32_u32 v21, s24"); e("v_rcp_f32 v20, v20"); e(f"v_mul_f32 v21, {hex(f2u(WA))}, v21")
        e("v_fma_f32 v20, v20, v21, 0.5"); e("v_cvt_u32_f32 v20, v20"); e("s_nop 0"); e("v_readfirstlane_b32 s77, v20"); e("s_nop 3")
        e(f"s_max_u32 s77, s77, {WMIN}"); e(f"s_min_u32 s77, s77, {WMAX}")
    else:
        e(f"s_mov_b32 s77, {wfix}")
    st3(250, 6)
    e("s_waitcnt vmcnt(16)"); st3(250, 7); e("s_barrier")
    dma16(lambda j: None, "s57", range(8, 16))
    unit_post()
    st3(250, 8)
    e("s_waitcnt vmcnt(16)"); st3(250, 9); e("s_barrier")
    e("s_mov_b32 s62, 1")
    e(f"s_sub_i32 s78, s48, {NEND}"); e("s_cmp_eq_u32 s23, 0"); e("s_cselect_b32 s78, s48, s78")
    ws = list(range(WMIN, WMAX+1)) if wfix is None else [wfix]
    def wloop(W, tag, lim):
        a = W // 2; odd = W & 1
        wj = [min(16, a + (odd and (j & 1))) for j in range(16)]
        jb = min(15, a-1+odd)
        def pre(j):
            if j == jb:
                e(f"s_waitcnt vmcnt({min(j, wj[j]-1)})"); e("s_barrier")
            else: e(f"s_waitcnt vmcnt({wj[j]-1})")
        e(f"L_w{tag}:")
        e(f"s_cmp_ge_i32 s62, {lim}"); e(f"s_cbranch_scc1 {'L_wend' if lim == 's78' else 'L_wdone'}")
        unit_pre()
        dma16(pre, "s57")
        unit_post()
        e("s_add_u32 s62, s62, 1")
        e(f"s_branch L_w{tag}")
    for W in ws[:-1]:
        e(f"s_cmp_eq_u32 s77, {W}"); e(f"s_cbranch_scc1 L_w{W}")
    e(f"s_branch L_w{ws[-1]}")
    for W in ws: wloop(W, W, "s78")
    wloop(WEND, "end", "s48")
    e("L_wdone:")
    st3(250, 10)
    e("s_waitcnt vmcnt(0)"); st3(250, 11); e("s_barrier")
    if stamp == 3:
        e("s_cmp_lg_u32 s20, 0"); e("s_cbranch_scc1 L_end")
        e("s_mov_b32 s28, s18"); e("s_and_b32 s29, s19, 0xffff"); e(f"s_mov_b32 s30, {WSB}"); e("s_mov_b32 s31, 0x20000")
        e("s_mul_i32 s25, s2, 768"); e(f"s_add_u32 s25, s25, {WSB-256*32-256*768}"); e("v_lshlrev_b32 v3, 2, v1")
        e(f"buffer_store_dword v250, v3, s[28:31], s25 offen offset:256")
    e("s_endpgm")

    e("L_sync:")
    e("s_mov_b32 s68, s18"); e("s_and_b32 s69, s19, 0xffff"); e(f"s_mov_b32 s70, {WSB}"); e("s_mov_b32 s71, 0x20000")
    e("s_mov_b32 s44, s16"); e("s_and_b32 s45, s17, 0xffff"); e("s_mov_b32 s46, 256"); e("s_mov_b32 s47, 0x20000")
    e("v_mov_b32 v20, 0"); e(f"v_mov_b32 v24, {MISC}"); e("v_mov_b32 v23, 0")
    e("s_mov_b64 exec, 1")
    e("s_lshl_b32 s24, s2, 7"); e(f"s_add_u32 s24, s24, {FLAGOFF}")
    e("buffer_store_dword v20, v20, s[68:71], s24 offen sc1")
    e("s_xor_b32 s55, s2, 8"); e("s_lshl_b32 s55, s55, 7"); e(f"s_add_u32 s55, s55, {FLAGOFF}")
    e("s_lshr_b32 s24, s2, 4"); e("s_lshl_b32 s24, s24, 3"); e("s_and_b32 s25, s2, 7"); e("s_add_u32 s24, s24, s25")
    e("s_and_b32 s25, s24, 1"); e("s_lshl_b32 s58, s25, 4")
    e("s_lshr_b32 s24, s24, 1"); e("s_lshl_b32 s24, s24, 2"); e("v_mov_b32 v21, s24")
    e("s_lshl_b32 s25, 1, s58"); e("v_mov_b32 v22, s25")
    e("s_waitcnt lgkmcnt(0)")
    piece_setup()
    e("ds_write_b32 v24, v20")
    e("s_waitcnt lgkmcnt(0)")
    e("s_cmp_eq_u32 s66, 1"); e("s_cbranch_scc1 L_end")
    e("s_waitcnt vmcnt(0)")
    e("s_cmp_eq_u32 s23, 0"); e("s_cbranch_scc0 L_sy1")
    e("buffer_atomic_add v22, v21, s[44:47], 0 offen sc0")
    e("L_sy1:")
    e("s_barrier"); e("s_barrier")
    e("s_cmp_eq_u32 s23, 0"); e("s_cbranch_scc1 L_sy2")
    e("buffer_atomic_add v22, v21, s[44:47], 0 offen sc0")
    e("L_sy2:")
    e("s_mov_b32 s62, 0"); e("s_mov_b32 s67, 0")
    e("L_syl:")
    e("s_barrier")
    e("s_add_u32 s62, s62, 1")
    e("s_cmp_ge_u32 s62, s48"); e("s_cbranch_scc1 L_syx")
    e("s_cmp_lt_u32 s62, 3"); e("s_cbranch_scc1 L_syl")
    e("s_cmp_eq_u32 s67, 0"); e("s_cbranch_scc0 L_sy3")
    e("s_waitcnt vmcnt(0)")
    e("v_readfirstlane_b32 s24, v22"); e("s_nop 3")
    e("s_lshr_b32 s24, s24, s58"); e("s_and_b32 s24, s24, 1"); e("s_add_u32 s67, s24, 1")
    e("v_mov_b32 v25, s67"); e("ds_write_b32 v24, v25"); e("s_waitcnt lgkmcnt(0)")
    e("s_cmp_eq_u32 s67, 1"); e("s_cbranch_scc1 L_end")
    e("L_sy3:")
    e("s_add_u32 s24, s62, 3"); e("s_cmp_lt_u32 s24, s48"); e("s_cbranch_scc1 L_syl")
    e("buffer_load_dword v23, v20, s[68:71], s55 offen sc1")
    e("s_waitcnt vmcnt(0)")
    e("v_readfirstlane_b32 s25, v23"); e("s_nop 3")
    e("s_cmp_eq_u32 s25, 1"); e("s_cbranch_scc0 L_syl")
    e("v_mov_b32 v25, 3"); e("ds_write_b32 v24, v25"); e("s_waitcnt lgkmcnt(0)")
    e("s_endpgm")
    e("L_syx:")
    e("s_cmp_eq_u32 s67, 0"); e("s_cbranch_scc0 L_sy4")
    e("s_waitcnt vmcnt(0)")
    e("v_readfirstlane_b32 s24, v22"); e("s_nop 3")
    e("s_lshr_b32 s24, s24, s58"); e("s_and_b32 s24, s24, 1"); e("s_add_u32 s67, s24, 1")
    e("s_cmp_eq_u32 s67, 1"); e("s_cbranch_scc1 L_sy5")
    e("L_sy4:")
    e("s_mov_b32 s72, 0x40000")
    e("L_poll:")
    e("s_sub_u32 s72, s72, 1"); e("s_cbranch_scc1 L_sy5")
    e("buffer_load_dword v23, v20, s[68:71], s55 offen sc1")
    e("s_waitcnt vmcnt(0)")
    e("v_readfirstlane_b32 s25, v23"); e("s_nop 3")
    e("s_cmp_eq_u32 s25, 1"); e("s_cbranch_scc0 L_poll")
    e("L_sy5:")
    e("v_mov_b32 v25, s67"); e("ds_write_b32 v24, v25 offset:4"); e("s_waitcnt lgkmcnt(0)"); e("s_barrier")
    e("L_end:"); e("s_endpgm")
    e('.section .rodata,"a"'); e(".p2align 6"); e(f".amdhsa_kernel {KN}")
    e("  .amdhsa_next_free_vgpr 256"); e("  .amdhsa_next_free_sgpr 102"); e("  .amdhsa_accum_offset 256"); e("  .amdhsa_group_segment_fixed_size 0")
    e("  .amdhsa_kernarg_size 64"); e("  .amdhsa_user_sgpr_count 2"); e("  .amdhsa_user_sgpr_kernarg_segment_ptr 1"); e("  .amdhsa_system_sgpr_workgroup_id_x 1")
    e(".end_amdhsa_kernel")
    return "\n".join(L) + "\n"
if __name__ == "__main__":
    from build import build
    specs = []
    for name, kw in eval(sys.argv[1]).items():
        open(name + ".s", "w").write(gen(**kw))
        specs.append(build(name + ".s"))
    print(" ".join(specs))
```

```python
import gen2, combo
from build import build
KN = gen2.KN
def spin(block, lds, vg, T=20, grid=256):
    return f"""; @launch grid=({grid},1,1) block=({block},1,1) lds={lds}
.amdgcn_target "amdgcn-amd-amdhsa--gfx950"
.text
.globl {KN}
.p2align 8
.type {KN},@function
{KN}:
s_cmp_ge_u32 s2, {grid}
s_cbranch_scc1 L_end
s_memrealtime s[4:5]
s_waitcnt lgkmcnt(0)
s_add_u32 s6, s4, {T*100}
L_spin:
s_memrealtime s[8:9]
s_waitcnt lgkmcnt(0)
s_sub_u32 s7, s8, s6
s_cmp_lt_i32 s7, 0
s_cbranch_scc1 L_spin
L_end:
s_endpgm
.section .rodata,"a"
.p2align 6
.amdhsa_kernel {KN}
  .amdhsa_next_free_vgpr {vg}
  .amdhsa_next_free_sgpr 102
  .amdhsa_accum_offset {min(vg,256)}
  .amdhsa_group_segment_fixed_size 0
  .amdhsa_kernarg_size 64
  .amdhsa_user_sgpr_count 2
  .amdhsa_user_sgpr_kernarg_segment_ptr 1
  .amdhsa_system_sgpr_workgroup_id_x 1
.end_amdhsa_kernel
"""
B = gen2.gen(stamp=1, enc=(100, 80), delta=3)
open("e0.s","w").write(B); build("e0.s")
open("e0s.s","w").write(gen2.gen(stamp=1, enc=(100, 80), delta=3, opol='sc1')); build("e0s.s")
combo.combo("s_big", spin(448, 156928, 256), B)
combo.combo("s_small", spin(64, 0, 8), B)
combo.combo("s_one", spin(64, 0, 8, grid=1), B)
combo.combo("s_mid", spin(256, 156928, 256), B)
```

```python
import sys, math, struct, re
KN = "standalone__paged_block_table_kv_pagedattention__sampling_kernel"
WSB = 537395200
KVB = 4100*32768
QB = 16*32*32*128*2
BLK = 1088
PART = 16*BLK
SLOT = 2*PART
NS = 3
QOFF = NS*SLOT
K0OFF = QOFF + SLOT
PRM = K0OFF + PART
LDS = PRM + 64
PSTRIDE = 36864
SLOWOFF = 16 << 20
FLAGOFF = 32 << 20

def f2u(x): return struct.unpack("<I", struct.pack("<f", x))[0]
HEADER = open("standalone__paged_block_table_kv_pagedattention__sampling.s.ref").read().split("; Override")[0]

vKA = 2; vVA = [3, 4]; vKB = 5; vVB = [6, 7]; vONE = 8; vE = [12, 13, 14, 15, 16, 17]; vQA = 18; vOA = 19
vST = 20; vL16 = 23
vQ = 24; vO = 56; vLA = 120; vS = [128, 144]; vNM = 160; vP = [168, 176]; vF = 184; vX = 216; vH = 224
vZ = vX+4; vLK = vX+5; vOR = 0
BIAS = 10.0
def R(b, n): return f"v[{b}:{b+n-1}]"
MF = "v_mfma_f32_16x16x32_bf16"
PACKINFO = []
CM = {'L_pc': "threads 0-7 of every workgroup read one line of this code each, which brings it into the XCD's L2", 'L_centry': 'compute waves: lane constants and descriptors', 'L_setup': 'lengths -> ranks -> tile ranges (s48 tiles from s49, step s50, s51 pieces; second segment s84..s88); wave 3 passes them to the loaders', 'L_cseg': 'segment start: clear accumulators, scale Q by log2(e)/sqrt(128), first tile with the true row max', 'L_loop': 'one 64-token tile per trip', 'L_epi': 'last tile: no more QK', 'L_own13': 'piece 1 with two partners', 'L_solo': 'item with a single piece', 'L_helper': 'pieces 0 and 2: publish the partial result', 'L_hslow': 'partner on another XCD (or not announced yet): write-through', 'L_hook': 'look the owner up in d_debug; touch the small hand-off lines', 'L_ann': "announce this workgroup's XCC id once its flags are cleared", 'L_mask0': 'tokens past the length get -inf', 'L_fb0': "a weight reached 2: take the block's true max, rescale everything that is at the old max, redo the block", 'L_aux': "loader waves: parameters, then the tile loop for this workgroup's number of loads in flight (s80 + fraction s79)", 'L_wend': 'last tiles of piece 1: as many loads in flight as the hardware takes', 'L_wdone': 'last tile: V only', 'L_lown': "piece 1: wait for the partners' flags and copy their partial results into LDS", 'L_lgo': 'some part was published write-through'}
PARAMS = ["s48", "s51", "s84", "s85", "s86", "s87", "s80"]


DOC = """;
"""

def gen(pol="nt", qpol="", delta=2, stamp=0, PD=5, thr=1024.0, opol="nt", prio=0, enc=None,
        WA=21.5, WC=1.5, KAP=0.15, AMIN=4, AMAX=16, NEND=None, wfix=None,
        OV2=3.2, MINMID=3, XS=1.05, XN=1.4, force_slow=0, pkadd=0, WG2=1, D3=0, dpol='', touch=0, lprio=0, nofetch=0, preread=3, prepol='', HK=4, OVH=0.5, cpf=1, CPL=8, DW=None, st2=0, WGN=2, NF=8, WPH=0, PDE=5, BH0=99, NENDL=0, XB=None, CR=6, LATE=None, A0=11, LG=(9, 5), AS=9, CB=2, noann=0, D3W=0.4, H3=0.3, wbk=None, cp2=0):
    def fb(i): i %= NF; return vF + 4*i if i < 8 else vH + 4*(i-8)
    if NEND is None: NEND = delta + 1
    if D3W is None: D3W = D3
    if DW is None: DW = delta - 0.3
    L = []
    e = L.append
    def st3(i):
        if stamp == 3:
            e("s_memrealtime s[100:101]"); e("s_waitcnt lgkmcnt(0)"); e(f"v_writelane_b32 v{vST}, s100, {i}")
    e(HEADER.rstrip())
    e(f"; @launch grid=(256,1,1) block=(384,1,1) lds={LDS}")
    e(DOC.rstrip())
    e('.amdgcn_target "amdgcn-amd-amdhsa--gfx950"')
    e(".text"); e(f".globl {KN}"); e(".p2align 8"); e(f".type {KN},@function"); e(f"{KN}:")
    e("s_cmp_ge_u32 s2, 256"); e("s_cbranch_scc1 L_end")
    e("s_load_dwordx16 s[4:19], s[0:1], 0")
    if stamp: e("s_memrealtime s[92:93]")
    if cpf:
        e("s_getpc_b64 s[24:25]"); e("L_pc:")
        e("s_lshr_b32 s26, s2, 3"); e(f"s_mul_i32 s26, s26, {CPL*128}")
        e("v_lshl_add_u32 v37, v0, 7, s26"); e(f"v_min_u32 v37, L_end-L_pc, v37")
        e(f"v_cmp_gt_u32 vcc, {CPL}, v0"); e("s_and_saveexec_b64 s[26:27], vcc"); e("s_cbranch_execz L_nopf")
        e("global_load_dword v36, v37, s[24:25]")
        e("L_nopf:")
        e("s_mov_b64 exec, -1")
    e("v_lshrrev_b32 v2, 6, v0"); e("v_and_b32 v1, 63, v0")
    e("s_and_b32 s21, s2, 7")
    e("v_readfirstlane_b32 s20, v2")
    e("v_and_b32 v32, 15, v1"); e("v_lshlrev_b32 v31, 2, v32")
    e("s_lshr_b32 s22, s2, 4"); e("s_bfe_u32 s23, s2, 0x10003")
    e("s_cmp_lt_u32 s20, 4"); e("s_cbranch_scc1 L_centry")
    def qaddr():
        e("s_lshl3_add_u32 s24, s22, s21"); e("s_lshl_b32 s24, s24, 15"); e("s_lshl_b32 s25, s73, 14"); e("s_add_u32 s24, s24, s25")
        e(f"s_mul_i32 s25, s73, {16*BLK}"); e(f"s_add_u32 s25, s25, {QOFF}")
    def qissue():
        for g in range(4):
            e("s_mov_b32 m0, s25"); e(f"s_add_u32 s25, s25, {4*BLK}")
            for j in range(4): e(f"buffer_load_dwordx4 v{24+j}, s[40:43], s24 offen offset:{BLK*j} {qpol} lds")
            if g < 3: e("s_add_u32 s24, s24, 4096")
    def nextk():
        e("s_and_b32 s24, s52, 63")
        e("v_readlane_b32 s44, v4, s24"); e("v_readlane_b32 s45, v5, s24")
        e("s_lshl2_add_u32 s24, s52, s73")
        e("s_cmp_lt_u32 s54, s48"); e("s_cselect_b32 s25, s27, 0")
        e("s_cmp_lt_u32 s24, s25"); e("s_cselect_b32 s44, s44, 0"); e("s_cselect_b32 s46, s76, 0")
        e("s_add_u32 s24, s24, 2")
        e("s_cmp_lt_u32 s24, s25"); e("s_cselect_b32 s45, s45, 0"); e("s_cselect_b32 s47, s76, 0")
        e("s_add_u32 s52, s52, s50"); e("s_add_u32 s54, s54, 1")
    def group(g, kbase, pre=None):
        isv, hf = g & 1, g >> 1
        e(f"s_add_u32 m0, {kbase}, {hf*8*BLK + isv*PART}")
        e(f"s_mov_b32 s{38 if isv else 34}, s{[46, 74, 47, 75][g]}")
        for j in range(4):
            if pre: pre(4*g+j)
            e(f"buffer_load_dwordx4 v{(12 if isv else 8)+j}, {'s[36:39]' if isv else 's[32:35]'}, s{[44, 55, 45, 56][g]} offen offset:{BLK*j} {pol} lds")
    def shiftkv():
        e("s_mov_b32 s55, s44"); e("s_mov_b32 s56, s45"); e("s_mov_b32 s74, s46"); e("s_mov_b32 s75, s47")
    def unit_post():
        e(f"s_add_u32 s57, s57, {SLOT}"); e(f"s_cmp_ge_u32 s57, {NS*SLOT}"); e("s_cselect_b32 s57, s77, s57")
    def first_loads():
        e("s_mov_b32 s54, 0")
        nextk()
        e(f"s_add_u32 s58, s77, {K0OFF}")
        if AS:
            cnt = [0]
            def pre(j):
                e(f"s_waitcnt vmcnt({AS-1})")
                if cnt[0] == AS-1: st3(7); e("s_barrier")
                if cnt[0] == AS+7: st3(9); e("s_barrier")
                cnt[0] += 1
            group(0, "s58", pre); group(2, "s58", pre)
            shiftkv(); nextk()
            for g in range(4): group(g, "s57", pre)
            unit_post()
            st3(8)
            return
        group(0, "s58"); group(2, "s58")
        shiftkv(); nextk()
        group(0, "s57"); group(1, "s57")
        st3(5)
        e("s_waitcnt vmcnt(16)"); st3(7); e("s_barrier")
        group(2, "s57"); group(3, "s57")
        unit_post()
        st3(8)
    e("s_and_b32 s73, s20, 1")
    e("s_lshl_b32 s24, s22, 10"); e("s_lshl2_add_u32 s24, s73, s24")
    e("v_lshl_add_u32 v3, v1, 4, s24")
    e("v_lshrrev_b32 v17, 4, v1"); e("v_xor_b32 v7, v32, v17"); e("v_lshlrev_b32 v7, 4, v7")
    e("v_lshl_add_u32 v16, v17, 8, v7")
    for j in range(1, 4): e(f"v_add_u32 v{24+j}, {256 - 64*j}, v16")
    e("v_add_u32 v24, 256, v16")
    e(f"s_mov_b32 s42, {QB+256}"); e("s_mov_b32 s43, 0x20000")
    qaddr()
    e("s_waitcnt lgkmcnt(0)")
    if stamp == 3:
        e(f"v_mov_b32 v{vST}, 0"); e(f"v_writelane_b32 v{vST}, s92, 0"); st3(1)
    e("global_load_dword v30, v31, s[12:13]")
    e("global_load_dword v4, v3, s[10:11]"); e("global_load_dword v5, v3, s[10:11] offset:8")
    e("s_sub_u32 s40, s4, 256"); e("s_subb_u32 s41, s5, 0"); e("s_and_b32 s41, s41, 0xffff")
    qissue()
    st3(2)
    e("s_lshl_b32 s24, s21, 8")
    e("s_add_u32 s32, s6, s24"); e("s_addc_u32 s33, s7, 0"); e("s_and_b32 s33, s33, 0xffff"); e(f"s_sub_u32 s76, {KVB}, s24"); e("s_mov_b32 s35, 0x20000")
    e("s_add_u32 s36, s8, s24"); e("s_addc_u32 s37, s9, 0"); e("s_and_b32 s37, s37, 0xffff"); e("s_mov_b32 s39, 0x20000")
    e("v_and_b32 v7, 2, v17"); e("v_xor_b32 v7, v32, v7"); e("v_lshlrev_b32 v7, 4, v7"); e("v_lshl_add_u32 v8, v17, 11, v7")
    e("v_and_b32 v6, 1, v17"); e("v_lshlrev_b32 v6, 1, v6"); e("v_xor_b32 v6, v32, v6"); e("v_lshlrev_b32 v6, 4, v6"); e("v_lshl_add_u32 v12, v17, 11, v6")
    for j in range(1, 4):
        e(f"v_add_u32 v{8+j}, {j*(8192-BLK)}, v8"); e(f"v_add_u32 v{12+j}, {j*(8192-BLK)}, v12")
    e(f"s_mul_i32 s77, s73, {4*BLK}"); e("s_mov_b32 s57, s77")
    e("s_mov_b32 s48, 2"); e("s_cmp_eq_u32 s23, 0"); e("s_cselect_b32 s50, 1, -1"); e(f"s_mov_b32 s78, {PRM}")
    st3(3)
    e("s_waitcnt vmcnt(16)")
    st3(4)
    e("v_readlane_b32 s26, v30, s22")
    e("v_lshlrev_b32 v4, 15, v4"); e("v_lshlrev_b32 v5, 15, v5")
    e("s_cmp_gt_i32 s26, 0"); e("s_cselect_b32 s26, s26, 0x1000"); e("s_min_u32 s26, s26, 0x1000")
    e("s_add_u32 s27, s26, 15"); e("s_lshr_b32 s27, s27, 4")
    e("s_sub_u32 s52, s26, 1"); e("s_lshr_b32 s52, s52, 6"); e("s_mul_i32 s52, s52, s23")
    first_loads()
    e(f"v_lshlrev_b32 v{vL16}, 4, v1")
    e(f"v_lshl_add_u32 v30, v32, 2, s78")
    e("ds_read_b32 v30, v30")
    e("s_lshl3_add_u32 s66, s22, s21"); e("s_and_b32 s91, s21, 1"); e("s_lshl_b32 s91, s91, 4")
    e("s_branch L_aux")

    e("L_centry:")
    e("s_waitcnt lgkmcnt(0)")
    if stamp == 3:
        e(f"v_mov_b32 v{vST}, 0"); e(f"v_writelane_b32 v{vST}, s92, 0"); st3(1)
    e("global_load_dword v30, v31, s[12:13]")
    e("v_lshrrev_b32 v11, 4, v1")
    e("v_and_b32 v12, 3, v1"); e("v_bfe_u32 v13, v1, 2, 2")
    e(f"v_mul_u32_u24 v14, {BLK}, v12"); e("v_lshl_add_u32 v14, v13, 8, v14")
    e("v_and_b32 v15, 2, v13"); e("v_xor_b32 v15, v11, v15"); e(f"v_lshl_add_u32 v{vKB}, v15, 4, v14")
    e(f"v_mul_u32_u24 v14, {BLK}, v13"); e("v_lshl_add_u32 v14, v11, 8, v14"); e("v_lshl_add_u32 v14, v12, 3, v14"); e(f"v_add_u32 v14, {PART}, v14")
    e("v_and_b32 v15, 1, v11"); e(f"v_lshl_add_u32 v{vVB[0]}, v15, 5, v14"); e("v_xor_b32 v15, 1, v15"); e(f"v_lshl_add_u32 v{vVB[1]}, v15, 5, v14")
    e("s_lshl_b32 s24, s20, 3"); e("v_add_u32 v14, s24, v13"); e(f"v_mul_u32_u24 v14, {BLK}, v14"); e("v_lshl_add_u32 v14, v12, 8, v14")
    e("v_xor_b32 v15, v11, v12"); e("v_lshl_add_u32 v14, v15, 4, v14"); e(f"v_add_u32 v{vQA}, {QOFF}, v14")
    e("v_lshrrev_b32 v14, 2, v1"); e("v_lshlrev_b32 v14, 8, v14"); e(f"v_lshl_add_u32 v{vOA}, v12, 4, v14")
    e(f"v_lshlrev_b32 v{vL16}, 4, v1")
    e("s_mov_b32 s61, 0x40004000")
    for r in range(4): e(f"v_mov_b32 v{vONE+r}, 0x3f803f80")
    e("s_mov_b32 s28, s18"); e("s_and_b32 s29, s19, 0xffff"); e(f"s_mov_b32 s30, {WSB}"); e("s_mov_b32 s31, 0x20000")
    e("s_mov_b32 s40, s14"); e("s_and_b32 s41, s15, 0xffff"); e(f"s_mov_b32 s42, {QB}"); e("s_mov_b32 s43, 0x20000")
    e("s_mov_b32 s36, s16"); e("s_and_b32 s37, s17, 0xffff"); e("s_mov_b32 s38, 256"); e("s_mov_b32 s39, 0x20000")
    e("s_mov_b32 s44, s28"); e("s_mov_b32 s45, s29"); e("s_mov_b32 s46, s30"); e("s_mov_b32 s47, 0x20000")
    e("s_getreg_b32 s89, hwreg(HW_REG_XCC_ID, 0, 3)"); e("s_or_b32 s89, s89, 8")
    e("s_waitcnt vmcnt(0)")
    e("L_setup:")
    c = math.log2(math.e) / math.sqrt(128.0)
    e("v_cmp_lt_i32 vcc, 0, v30"); e("v_mov_b32 v31, 0x1000"); e("v_mov_b32 v34, 0")
    e("v_cndmask_b32 v30, v31, v30, vcc")
    e("s_mov_b32 s68, vcc_lo")
    e("v_min_u32 v30, v30, v31")
    e("v_lshl_add_u32 v32, v30, 4, v32")
    e("v_add_u32 v31, 63, v30"); e("v_lshrrev_b32 v31, 6, v31")
    for k in range(1, 16):
        e(f"v_sub_u32_dpp v33, v32, v32 row_ror:{k} row_mask:0xf bank_mask:0xf"); e("v_alignbit_b32 v34, v34, v33, 31")
        if k in (2, 4, 6, 8):
            src = "v31" if k == 2 else "v35"
            e(f"v_add_u32_dpp v35, {src}, {src} row_ror:{16 >> (k//2)} row_mask:0xf bank_mask:0xf")
    e("v_bcnt_u32_b32 v34, v34, 0")
    e("v_readlane_b32 s26, v30, s22"); e("v_readlane_b32 s53, v31, s22"); e("v_readlane_b32 s69, v34, s22"); e("v_readlane_b32 s90, v35, 0")
    e("s_sub_u32 s24, 15, s69")
    e("v_cmp_eq_u32 vcc, s24, v34")
    e("s_bitcmp1_b32 s68, s22"); e(f"s_cselect_b32 s60, {hex(f2u(c))}, 0")
    e("s_ff1_i32_b32 s86, vcc_lo")
    e("v_readlane_b32 s70, v31, s86"); e("v_readlane_b32 s87, v30, s86")
    e("s_bitcmp1_b32 s68, s86"); e(f"s_cselect_b32 s88, {hex(f2u(c))}, 0")
    e("s_add_u32 s27, s26, 15"); e("s_lshr_b32 s27, s27, 4")
    e("s_lshl3_add_u32 s66, s22, s21")
    e("s_cmp_ge_u32 s69, 8"); e("s_cselect_b32 s71, s53, s70"); e("s_cselect_b32 s72, s70, s53")
    d3 = delta - D3
    e("s_mul_i32 s24, s72, 3"); e("s_sub_i32 s24, s24, s71"); e("s_lshl_b32 s24, s24, 1")
    e(f"s_sub_i32 s24, s24, {int(round(2*(OV2 + 3*delta - d3))) - 4}"); e("s_ashr_i32 s24, s24, 3"); e("s_max_i32 s78, s24, 1")
    e("s_lshl_b32 s24, s78, 1"); e("s_sub_i32 s24, s71, s24"); e(f"s_sub_i32 s24, s24, {int(round(2*OV2 + d3)) - 1}"); e("s_max_i32 s24, s24, 0")
    e("s_mul_i32 s24, s24, 0x5556"); e("s_lshr_b32 s84, s24, 16")
    e("s_lshr_b32 s24, s6, 8"); e("s_add_u32 s24, s24, s21"); e("s_and_b32 s24, s24, 3"); e("s_cmp_eq_u32 s24, 1")
    e(f"s_cselect_b32 s24, {min(64,int(round(32*XS)))}, {min(64,int(round(32*XN)))}"); e("s_mul_i32 s24, s24, s90"); e("s_lshl_b32 s25, s71, 9")
    e("s_cmp_gt_u32 s25, s24"); e("s_cselect_b32 s84, s84, 0")
    e("s_cmp_ge_u32 s72, 2"); e("s_cselect_b32 s84, s84, 0")
    e(f"s_cmp_ge_u32 s84, {MINMID}"); e("s_cselect_b32 s84, s84, 0")
    e("s_sub_u32 s24, s71, s84"); e(f"s_sub_i32 s24, s24, {d3}"); e("s_lshr_b32 s85, s24, 1")
    e(f"s_sub_i32 s24, s53, {delta}"); e("s_max_i32 s24, s24, 0"); e("s_lshr_b32 s24, s24, 1")
    e("s_mov_b32 s25, 0")
    e("s_cmp_eq_u32 s24, 0"); e("s_cselect_b32 s51, 1, 2")
    e("s_cmp_eq_u32 s84, 0"); e("s_cbranch_scc1 L_set2")
    e("s_cmp_ge_u32 s69, 8")
    e("s_cselect_b32 s24, s85, s78"); e("s_cselect_b32 s25, s84, 0"); e("s_cselect_b32 s51, 3, 2"); e("s_cselect_b32 s84, 0, s84")
    e("L_set2:")
    e("s_sub_u32 s25, s53, s25"); e("s_sub_u32 s25, s25, s24")
    e("s_sub_u32 s49, s53, 1")
    e("s_cmp_eq_u32 s23, 0")
    e("s_cselect_b32 s48, s24, s25"); e("s_cselect_b32 s49, 0, s49"); e("s_cselect_b32 s50, 1, -1"); e("s_cselect_b32 s84, s84, 0")
    e("s_and_b32 s91, s21, 1"); e("s_lshl_b32 s91, s91, 4")
    e("s_cmp_eq_u32 s20, 3"); e("s_cbranch_scc0 L_noprm")
    if wfix is None:
        e("s_lshl_b32 s25, s48, 6")
        e("s_lshl_b32 s24, s53, 6"); e("s_sub_u32 s24, s24, s26"); e(f"s_lshr_b32 s24, s24, {CR}"); e("s_sub_i32 s24, s25, s24"); e(f"s_sub_i32 s24, s24, {int(64*DW)}")
        e("s_cmp_eq_u32 s51, 3"); e(f"s_cselect_b32 s72, {int(64*D3W)}, 0"); e(f"s_cselect_b32 s78, {int(64*H3)}, 0"); e("s_add_u32 s24, s24, s72"); e("s_add_u32 s25, s25, s78")
        e("s_lshl_b32 s72, s84, 6"); e(f"s_cselect_b32 s78, {int(64*OV2)}, 0"); e("s_add_u32 s25, s25, s72"); e("s_add_u32 s25, s25, s78"); e(f"s_add_u32 s25, s25, {int(64*OVH)}")
        e("s_cmp_eq_u32 s23, 0"); e("s_cselect_b32 s24, s25, s24")
        e(f"s_sub_i32 s24, s24, {int(64*WC)}"); e("s_max_i32 s24, s24, 0")
        e("s_lshl_b32 s72, s90, 1"); e(f"s_sub_i32 s72, s72, {int(64*WC + 32*DW + 4 - 32*OVH)}"); e("s_max_i32 s72, s72, 32")
        e("v_cvt_f32_u32 v30, s72"); e("v_cvt_f32_u32 v31, s24")
        e(f"v_mul_f32 v32, {hex(f2u(KAP))}, v31"); e("v_sub_f32 v32, v30, v32"); e(f"v_mul_f32 v30, {hex(f2u(0.25))}, v30"); e("v_max_f32 v32, v32, v30")
        e("v_rcp_f32 v32, v32"); e(f"v_mul_f32 v31, {hex(f2u(WA/2*(1-KAP)*65536))}, v31")
        e("v_mul_f32 v30, v32, v31")
        if XB:
            tab = sum((int(round(b*2)) + 8) << (4*i) for i, b in enumerate(XB))
            e("s_and_b32 s24, s89, 7"); e("s_lshl_b32 s24, s24, 2"); e(f"s_lshr_b32 s24, {hex(tab)}, s24"); e("s_and_b32 s24, s24, 15"); e("s_add_u32 s24, s24, 192")
            e("v_cvt_f32_u32 v31, s24"); e(f"v_mul_f32 v31, {hex(f2u(0.005))}, v31"); e("v_mul_f32 v30, v30, v31")
        e("v_cvt_u32_f32 v30, v30")
        e("s_nop 0"); e("v_readfirstlane_b32 s81, v30"); e("s_nop 3")
        if CB:
            e("s_lshr_b32 s24, s6, 8"); e("s_add_u32 s24, s24, s21"); e("s_and_b32 s24, s24, 3"); e("s_cmp_eq_u32 s24, 1"); e(f"s_cselect_b32 s24, {CB}, 0")
            e(f"s_sub_i32 s25, s81, {11<<16}"); e("s_max_i32 s25, s25, 0"); e("s_mul_i32 s25, s25, s24"); e("s_add_u32 s81, s81, s25")
        e(f"s_max_u32 s81, s81, {AMIN<<16}"); e(f"s_min_u32 s81, s81, {(AMAX<<16)-1}")
    else:
        e(f"s_mov_b32 s81, {min(int(wfix/2*65536), (AMAX<<16)-1)}")
    for i, r in enumerate(PARAMS): e(f"v_writelane_b32 v30, {r.replace('s80', 's81')}, {i}")
    e(f"v_lshlrev_b32 v31, 2, v1"); e(f"v_add_u32 v31, {PRM}, v31")
    e("s_mov_b64 exec, 0xff")
    e("ds_write_b32 v31, v30")
    e("s_mov_b64 exec, -1")
    e("s_waitcnt lgkmcnt(0)")
    e("L_noprm:")
    e("s_cmp_eq_u32 s48, 0"); e("s_cbranch_scc1 L_end")
    def next_seg():
        e("s_mov_b32 s48, s84"); e("s_mov_b32 s49, s85"); e("s_mov_b32 s50, 1"); e("s_mov_b32 s51, 3"); e("s_mov_b32 s23, 2")
        e("s_mov_b32 s22, s86"); e("s_mov_b32 s26, s87"); e("s_mov_b32 s60, s88"); e("s_mov_b32 s84, 0")
        e("s_add_u32 s27, s26, 15"); e("s_lshr_b32 s27, s27, 4"); e("s_lshl3_add_u32 s66, s22, s21")

    if stamp == 2:
        for i in range(3): e(f"v_mov_b32 v{vST+i}, 0")
        e("s_mov_b32 s78, 1")
    if stamp: e("s_add_u32 s79, s48, s84"); e("s_mov_b32 s80, 0"); e("s_mov_b32 s67, 0")
    if prio: e(f"s_setprio {prio}")
    e("s_mov_b32 s63, 0")
    e("s_cmp_eq_u32 s23, 1"); e("s_cselect_b32 s52, s51, 1"); e("s_cmp_eq_u32 s20, 0"); e("s_cselect_b32 s52, s52, 1")
    e("s_cmp_gt_u32 s52, 1"); e("s_cselect_b32 s52, 1, 0"); e("s_cbranch_scc0 L_cseg")
    e("v_mov_b32 v12, 0"); e("v_lshlrev_b32 v13, 2, v1")
    e("s_lshl_b32 s24, s66, 7"); e(f"s_add_u32 s24, s24, {FLAGOFF}")
    e("s_mov_b64 exec, 0xff")
    e("buffer_store_dword v12, v13, s[28:31], s24 offen")
    e("s_mov_b64 exec, -1")
    e("L_cseg:")
    e(f"v_add_u32 v{vKA}, {K0OFF}, v{vKB}")
    e(f"v_add_u32 v{vVA[0]}, s63, v{vVB[0]}"); e(f"v_add_u32 v{vVA[1]}, s63, v{vVB[1]}")
    for r in range(vO, vO+72): e(f"v_mov_b32 v{r}, 0")
    for r in range(vP[1], vP[1]+8): e(f"v_mov_b32 v{r}, 0")
    e("s_lshl_b32 s24, s49, 6"); e("s_sub_u32 s54, s26, s24"); e(f"v_lshrrev_b32 v{vX}, 4, v1"); e(f"v_sub_u32 v{vX}, s54, v{vX}")
    e(f"v_mov_b32 v{vX+1}, 0xff800000"); e(f"v_mov_b32 v{vX+2}, s60")
    e("s_lshr_b32 s57, s66, 1"); e("s_lshl_b32 s57, s57, 2"); e(f"v_mov_b32 v{vZ}, 0")
    e("s_lshl_b32 s25, s20, 13"); e("s_lshl_b32 s59, s66, 15"); e("s_add_u32 s59, s59, s25")
    e("s_lshr_b32 s24, s23, 1"); e("s_lshl1_add_u32 s24, s66, s24"); e(f"s_mul_i32 s55, s24, {PSTRIDE}")
    e("s_add_u32 s56, s55, s25")
    e("s_cmp_eq_u32 s23, 0")
    e("s_cselect_b32 s44, s40, s28"); e("s_cselect_b32 s45, s41, s29"); e("s_cselect_b32 s46, s42, s30"); e("s_cselect_b32 s56, s59, s56")
    st3(2)
    e("s_barrier")
    st3(3)
    for qh in range(2):
        for ks in range(4): e(f"ds_read_b128 {R(vQ+16*qh+4*ks,4)}, v{vQA} offset:{qh*4*BLK + ks*64}")
    def kread(buf, kb, i): e(f"ds_read_b128 {R(fb(buf),4)}, v{vKA} offset:{(i&3)*64 + (2*kb+(i>>2))*4*BLK}")
    def vread(buf, kb, db):
        for tt in range(2): e(f"ds_read_b64_tr_b16 {R(fb(buf)+2*tt,2)}, v{vVA[db&1]} offset:{(2*kb+tt)*4*BLK + 64*(db>>1)}")
    for s in range(8):
        e(f"s_waitcnt lgkmcnt({7-s})")
        for k in range(4):
            r = vQ+4*s+k; a = vE[(2*k) % 6]
            e(f"v_lshlrev_b32 v{a}, 16, v{r}"); e(f"v_and_b32 v{a+1}, 0xffff0000, v{r}")
            e(f"v_pk_mul_f32 {R(a,2)}, {R(a,2)}, {R(vX+2,2)} op_sel_hi:[1,0]")
            e(f"v_cvt_pk_bf16_f32 v{r}, v{a}, v{a+1}")
    st3(4)
    e("s_waitcnt vmcnt(0)")
    e("s_cmp_eq_u32 s52, 1"); e("s_cbranch_scc1 L_ann")
    e("L_annr:")
    e("s_barrier")
    st3(5)
    if stamp in (1, 2):
        e("s_cmp_eq_u32 s80, 0"); e("s_cbranch_scc0 L_nost"); e("s_memrealtime s[94:95]"); e("s_waitcnt lgkmcnt(0)"); e("L_nost:")
    def sreg(p, tt, qh): return vS[p] + 8*tt + 4*qh
    def qk(p, i, buf, qh, first_c):
        tt, ks = i >> 2, i & 3
        d = sreg(p, tt, qh)
        cc = first_c(qh) if ks == 0 else R(d, 4)
        e(f"{MF} {R(d,4)}, {R(fb(buf),4)}, {R(vQ+16*qh+4*ks,4)}, {cc}")
    def pv(p, db, buf, qh):
        d = vO + 8*db + 4*qh
        e(f"{MF} {R(d,4)}, {R(fb(buf),4)}, {R(vP[p]+4*qh,4)}, {R(d,4)}")
    def allred(op, d, t):
        for sw in ("v_permlane32_swap_b32", "v_permlane16_swap_b32"):
            for q in range(2): e(f"v_mov_b32 v{t+q}, v{d+q}")
            e("s_nop 0")
            for q in range(2): e(f"{sw} v{d+q}, v{t+q}")
            for q in range(2): e(f"{op} v{d+q}, v{d+q}, v{t+q}")
    def rowmax(p, d, t):
        for qh in range(2):
            a, b = sreg(p, 0, qh), sreg(p, 1, qh)
            e(f"v_max3_f32 v{d+qh}, v{a}, v{a+1}, v{a+2}"); e(f"v_max3_f32 v{d+qh}, v{d+qh}, v{a+3}, v{b}")
            e(f"v_max3_f32 v{d+qh}, v{d+qh}, v{b+1}, v{b+2}"); e(f"v_max_f32 v{d+qh}, v{d+qh}, v{b+3}")
        allred("v_max_f32", d, t)
    def subm(base, n, d):
        for r in range(n): e(f"v_sub_f32 v{base+r}, v{base+r}, v{d+((r>>2)&1)}")
    NREM = PD-1
    def grab(f):
        n0 = len(L); f(); ops = L[n0:]; del L[n0:]; return ops
    def pbuf(i): return vF + 4*i if i < 8 else vH + 4*(i-8)
    def pread(i): e(f"ds_read_b128 {R(pbuf(i),4)}, v{vKA} offset:{(i&3)*64 + (i>>2)*4*BLK}")
    def pqk(i, qh):
        d = sreg(i >> 3, (i >> 2) & 1, qh); ks = i & 3
        e(f"{MF} {R(d,4)}, {R(pbuf(i),4)}, {R(vQ+16*qh+4*ks,4)}, {'0' if ks == 0 else R(d,4)}")
    fl = grab(lambda: rowmax(0, vE[0], vE[2]))
    fl += [f"v_sub_f32 v{vNM+r}, {hex(f2u(-BIAS))}, v{vE[0]+(r>>2)}" for r in range(8)]
    fl += [f"v_add_f32 v{vS[0]+r}, v{vS[0]+r}, v{vNM+4*((r>>2)&1)}" for r in range(16)]
    zz = [f"v_mov_b32 v{fb(b)+r}, 0" for b in range(-NREM, 0) for r in range(4)]
    late_zero = NF > 8
    for i in range(8): pread(i)
    for i in range(16):
        e(f"s_waitcnt lgkmcnt({7 if i <= 8 else 15-i})")
        for qh in range(2):
            pqk(i, qh)
            if qh == 1 and i < 8: pread(i+8)
            g = 2*i+qh
            if g == BH0: st3(6); e("s_barrier"); st3(7)
            if 16 <= g < 20 and not late_zero:
                for t in zz[len(zz)*(g-16)//4:len(zz)*(g-15)//4]: e(t)
            if g == 19:
                if late_zero: e("s_nop 3")
                e("s_cmp_lt_u32 s54, 32"); e("s_cbranch_scc1 L_mask0"); e("L_maskr0:")
            if g >= 20:
                for t in fl[len(fl)*(g-20)//12:len(fl)*(g-19)//12]: e(t)
    e(f"v_add_u32 v{vKA}, s63, v{vKB}")
    if late_zero:
        for t in zz: e(t)
    PRO_S1 = ["s_cmp_lt_u32 s54, 64", "s_cbranch_scc1 L_mask1", "L_maskr1:"] + [f"v_add_f32 v{vS[1]+r}, v{vS[1]+r}, v{vNM+4*((r>>2)&1)}" for r in range(16)]

    ORDER = [('Q',0),('Q',1),('Q',2),('P',0),('Q',3),('P',1),('Q',4),('P',2),('Q',5),('P',3),('Q',6),('P',4),('Q',7),('P',5),('P',6),('P',7)]
    ORDER_P = [('P',a) for a in range(8)]
    def sm_ops(p):
        S, P = vS[p], vP[p]
        ops = []
        E = vE
        def ex(r): ops.append((8, f"v_exp_f32 v{E[r % 6]}, v{S+r}"))
        def preg(k):
            return P + 4*((k >> 1) & 1) + 2*(k >> 2) + (k & 1)
        def fin(k):
            a, b = E[(2*k) % 6], E[(2*k+1) % 6]
            ops.append((4, f"v_cvt_pk_bf16_f32 v{preg(k)}, v{a}, v{b}"))
            if k == 2: ops.append((4, f"v_or3_b32 v{vOR}, v{preg(0)}, v{preg(1)}, v{preg(2)}"))
            if k in (4, 6): ops.append((4, f"v_or3_b32 v{vOR}, v{vOR}, v{preg(k-1)}, v{preg(k)}"))
        ex(0); ex(1); ex(2)
        for k in range(8):
            if 2*k+3 < 16: ex(2*k+3)
            fin(k)
            if 2*k+4 < 16: ex(2*k+4)
        ops.append((4, f"v_bitop3_b32 v{vOR}, v{vOR}, v{P+7}, s61 bitop3:0xa8"))
        ops.append((4, f"v_cmp_ne_u32 vcc, 0, v{vOR}"))
        return ops
    def needs_wait(i): return (i - WPH) % WGN == 0
    def pack(p):
        ops = [t for _, t in sm_ops(p)]
        X = sorted([t for t in ops if t.startswith("v_exp")], key=lambda t: int(t.split("v")[-1]))
        rest = [t for t in ops if not t.startswith("v_exp")]
        gaps = []
        for i, m in enumerate(ORDER):
            if m == ('P', 0): gaps += [[i, 0, []], [i, 0, []]]
            gaps.append([i, 0, []])
            ld = 4 if ORDER[(i+PD) % 16][0] == 'Q' else 8
            if needs_wait(i+1): ld += 4
            if i == 15: ld += 4
            if i == 16-PD: ld += 4
            gaps.append([i, ld, []])
        xpos = []
        for t, g in enumerate(gaps):
            if g[1] == 0 and len(xpos) < 16:
                g[2].append(X[len(xpos)]); g[1] = 8; xpos.append(t)
        lo = 0; k = 0
        for t in rest:
            if t.startswith("v_cvt"):
                lo = max(lo, xpos[2*k+1]+1); hi = xpos[2*k+6]-1 if 2*k+6 < 16 else len(gaps)-4; k += 1
            else: hi = min(lo+5, len(gaps)-2)
            hi = max(hi, lo)
            c = next((x for x in range(lo, hi+1) if gaps[x][1] <= 4), None)
            if c is None: c = min(range(lo, hi+1), key=lambda x: (gaps[x][1], x))
            gaps[c][2].append(t); gaps[c][1] += 4; lo = c
        PACKINFO.append(sum(max(16, 8+g[1]) for g in gaps))
        out = [[] for _ in range(16)]
        for g in gaps: out[g[0]].append(g[2])
        return out
    fbn = [0]
    stubs = []
    def check(p):
        fbn[0] += 1; n = fbn[0]
        e(f"s_cbranch_vccnz L_fbs{n}")
        e(f"L_fbr{n}:")
        stubs.append((n, p))
    class Stream:
        def __init__(s): s.q = []
        def read(s, tag, n): s.q += [tag]*n
        def need(s, tags):
            idx = max([i for i, t in enumerate(s.q) if t in tags], default=-1)
            if idx < 0: return
            n = len(s.q) - 1 - idx
            s.q = s.q[idx+1:]
            e(f"s_waitcnt lgkmcnt({min(n, 15)})")
        def copy(s):
            o = Stream(); o.q = list(s.q); return o
    def mf(m, half, buf, qh):
        if m[0] == 'Q': qk(half, m[1], buf, qh, lambda q: R(vNM+4*q, 4))
        else: pv(half, m[1], buf, qh)
    def rd(st, m, half, buf, tag):
        if m[0] == 'Q': kread(buf, half, m[1]); st.read(tag, 1)
        else: vread(buf, half, m[1]); st.read(tag, 2)
    def spread(ops, weights):
        tot = sum(c for c, _ in ops); out = [[] for _ in weights]; acc = 0
        W = sum(weights); cum = [sum(weights[:i+1])/W for i in range(len(weights))]
        for c, t in ops:
            x = (acc + c/2) / tot
            g = next(i for i, y in enumerate(cum) if x <= y + 1e-9); out[g].append(t); acc += c
        return out
    smA = pack(1); smB = pack(0)
    CUT = 15-NREM
    pre = [t for i in range(CUT+1) for g in (smB[i] if i < CUT else smB[i][:-1]) for t in g]
    for k, t in enumerate(pre):
        e(t)
        if t.startswith("v_exp") and k+1 < len(pre) and pre[k+1].startswith("v_cvt"): e("s_nop 0")
    for t in PRO_S1: e(t)
    e("s_sub_u32 s62, s48, 1"); e(f"s_cmp_gt_u32 s62, {HK}"); e(f"s_cselect_b32 s68, {HK}, 0"); e("s_cmp_eq_u32 s23, 1"); e("s_cselect_b32 s68, 0, s68")
    e("s_sub_u32 s62, s62, s68"); e("s_mov_b32 s69, s68")
    if BH0 > 31: st3(6); e("s_barrier"); st3(7)
    if stamp == 2:
        e("s_cmp_eq_u32 s80, 0"); e("s_cbranch_scc1 L_nost2")
        e("s_memtime s[72:73]"); e("s_memrealtime s[76:77]"); e("s_waitcnt lgkmcnt(0)"); e("s_add_u32 s78, s78, 1")
        e("s_mov_b32 m0, s78"); e("s_nop 0")
        e(f"v_writelane_b32 v{vST}, s72, m0"); e(f"v_writelane_b32 v{vST+1}, s72, m0"); e(f"v_writelane_b32 v{vST+2}, s76, m0")
        e("L_nost2:")
    e("s_sub_u32 s62, s62, 1"); e("s_cbranch_scc1 L_epi")

    def slot_adv():
        e(f"s_add_u32 s63, s63, {SLOT}"); e(f"s_cmp_eq_u32 s63, {NS*SLOT}"); e("s_cselect_b32 s63, 0, s63")
    class Body:
        def __init__(s, full):
            s.full = full
            s.seq = [(m, 0) for m in (ORDER if full else ORDER_P)] + [(m, 1) for m in (ORDER if full else ORDER_P)]
            s.N = len(s.seq); s.nA = s.N//2
            s.st = Stream(); s.nxt = 0
            for k in range(NREM): s.st.read(-NREM+k, 1 if ORDER[16-NREM+k][0] == 'Q' else 2)
        def issue(s, k):
            while s.nxt <= min(k, s.N-1):
                i = s.nxt
                if i == s.nA: e("s_barrier")
                rd(s.st, s.seq[i][0], s.seq[i][1], i if s.full else i % 8, i); s.nxt += 1
        def frag(s, i, gs, cut=False):
            m, half = s.seq[i] if i >= 0 else (ORDER[16+i], 1)
            if s.full:
                if needs_wait(i) or i == -NREM:
                    j = i+1
                    while not needs_wait(j): j += 1
                    s.st.need(list(range(i, j)))
            else: s.st.need([i])
            def emit(g):
                for t in g:
                    if callable(t): t(s)
                    else: e(t)
            gs = list(gs)
            if m == ('P', 0):
                if len(gs) == 2:
                    h0, h1 = len(gs[0])//2, len(gs[1])//2
                    gs = [gs[0][:h0], gs[0][h0:], gs[1][:h1], gs[1][h1:]]
                e(f"{MF} {R(vLA,4)}, {R(vONE,4)}, {R(vP[half],4)}, {R(vLA,4)}"); emit(gs[0])
                e(f"{MF} {R(vLA+4,4)}, {R(vONE,4)}, {R(vP[half]+4,4)}, {R(vLA+4,4)}"); emit(gs[1])
                gs = gs[2:]
            bi = i if (s.full or i < 0) else i % 8
            mf(m, half, bi, 0)
            emit(gs[0])
            mf(m, half, bi, 1)
            if cut: return
            s.issue(i+(PD if s.full else min(PD, PDE)))
            emit(gs[1])
        def top(s):
            s.issue(0)
            for t in smB[CUT][-1]: e(t)
            for k in range(NREM): s.frag(-NREM+k, smB[16-NREM+k])
            check(0)
        def stepA(s, extra={}):
            if s.full: sm = smA
            else:
                sp = spread(sm_ops(1), [2, 2] + [1, 1]*6 + [1, 0]); sm = [[sp[2*i], sp[2*i+1]] for i in range(8)]
            for i in range(s.nA):
                s.frag(i, sm[i])
                for t in extra.get(i, []): e(t)
            check(1)
    e(".p2align 6")
    e("L_loop:")
    B = Body(True)
    B.top(); B.stepA({2: [f"s_add_u32 s63, s63, {SLOT}"], 4: [f"s_cmp_eq_u32 s63, {NS*SLOT}", "s_cselect_b32 s63, 0, s63"]})
    lastq = max(i for i in range(16) if ORDER[i][0] == 'Q'); lastv = [max(i for i in range(16) if ORDER[i][0] == 'P' and ORDER[i][1] & 1 == q) for q in range(2)]
    upd = {16+lastq-PD: [f"v_add_u32 v{vKA}, s63, v{vKB}"]}
    for q in range(2): upd.setdefault(16+lastv[q]-PD, []).append(f"v_add_u32 v{vVA[q]}, s63, v{vVB[q]}")
    for i in range(16, 16+CUT+1):
        if i == 16+CUT and stamp != 2: e("s_sub_u32 s62, s62, 1")
        B.frag(i, smB[i-16], cut=(i == 16+CUT))
        for t in upd.get(i, []): e(t)
    if stamp == 2:
        e("s_waitcnt lgkmcnt(0)"); e("s_memtime s[72:73]"); e("s_waitcnt lgkmcnt(0)"); e("s_barrier")
        e("s_memtime s[74:75]"); e("s_memrealtime s[76:77]"); e("s_waitcnt lgkmcnt(0)"); e("s_add_u32 s78, s78, 1")
        e("s_mov_b32 m0, s78"); e("s_nop 0")
        e(f"v_writelane_b32 v{vST}, s72, m0"); e(f"v_writelane_b32 v{vST+1}, s74, m0"); e(f"v_writelane_b32 v{vST+2}, s76, m0")
        e("s_sub_u32 s62, s62, 1")
    else:
        e("s_barrier")
    e("s_cbranch_scc0 L_loop")
    e("s_sub_u32 s62, s68, 1"); e("s_cbranch_scc0 L_hooks")
    e("L_epi:")
    if stamp == 4: e("s_memrealtime s[94:95]")
    st3(8)
    e("s_cmp_eq_u32 s23, 1"); e("s_cselect_b32 s69, 1, s69"); e("s_cmp_eq_u32 s69, 0"); e("s_cbranch_scc0 L_nolk")
    e("s_call_b64 s[64:65], L_hook")
    e("L_nolk:")
    B = Body(False)
    B.top(); B.stepA()
    st3(9)
    slot_adv()
    vM = vS[1]
    e(f"v_sub_f32 v{vM}, 0, v{vNM}"); e(f"v_sub_f32 v{vM+1}, 0, v{vNM+4}")
    e("s_cmp_eq_u32 s23, 1"); e("s_cbranch_scc0 L_helper")
    e("s_cmp_eq_u32 s51, 2"); e("s_cbranch_scc0 L_own13")
    def stepB(b, fill, after):
        b = b_copy(b)
        per = [fill[len(fill)*g//16:len(fill)*(g+1)//16] for g in range(16)] if not isinstance(fill, dict) else [fill.get(g, []) for g in range(16)]
        for i in range(8):
            b.frag(8+i, [per[2*i], per[2*i+1]])
            if after and i >= 2: after(i-2)
        if after:
            after(6); after(7)
        return b
    def b_copy(b):
        o = Body(False); o.st = b.st.copy(); o.nxt = b.nxt; return o
    def outcvt(i, qh):
        d = vF + 8*i + 4*qh
        for k in range(4):
            o = vO + 8*(2*i+(k >> 1)) + 4*qh + 2*(k & 1)
            e(f"v_cvt_pk_bf16_f32 v{d+k}, v{o}, v{o+1}")
    vW = [vNM, vNM+1]; vRD = vNM+2
    def stage_addr():
        o = []
        a, b2 = vNM+3, vNM+4
        o += [f"s_add_u32 s24, s25, {QOFF}", f"v_bfe_u32 v{a}, v1, 1, 2", f"v_lshrrev_b32 v{b2}, 5, v1", f"v_xor_b32 v{a}, v{a}, v{b2}",
              f"v_and_b32 v{b2}, 15, v1", f"v_lshl_add_u32 v{b2}, v{b2}, 6, s24", f"v_lshl_add_u32 v{a}, v{a}, 4, v{b2}",
              f"v_bfe_u32 v{b2}, v1, 4, 1", f"v_lshl_add_u32 v{vW[0]}, v{b2}, 3, v{a}", f"v_xor_b32 v{vW[1]}, 32, v{vW[0]}",
              f"v_bfe_u32 v{a}, v1, 3, 2", f"v_lshlrev_b32 v{a}, 4, v{a}", f"v_xor_b32 v{a}, v{a}, v{vL16}", f"v_add_u32 v{vRD}, s24, v{a}"]
        return o
    def outstage(b, i, qh):
        d = vF + 8*i + 4*qh
        for k in range(2): e(f"ds_write_b64 v{vW[k]}, {R(d+2*k,2)} offset:{1024*(2*i+qh)}")
        e(f"ds_read_b128 {R(d,4)}, v{vRD} offset:{1024*(2*i+qh)}")
        b.st.read(('o', i, qh), 3)
    def outstore(b, i, qh):
        d = vF + 8*i + 4*qh
        b.st.need([('o', i, qh)])
        e(f"buffer_store_dwordx4 {R(d,4)}, v{vOA}, s[40:43], s{59 if qh == 0 else 58} offen offset:{64*i} {opol}")
    def sel(q, n):
        lo = "[0,%d%s]" % (q, ",0" if n == 3 else ""); hi = "[1,%d%s]" % (q, ",1" if n == 3 else "")
        return f"op_sel:{lo} op_sel_hi:{hi}"
    def final(k):
        b = b_copy(B)
        e("s_add_u32 s58, s59, 4096")
        m, l, ma, la, mb, lb, t = vM, vM+2, vM+4, vM+6, vM+8, vM+10, vM+12
        lsrc = [vLA, vLA+4]
        fill = {}
        if k:
            e("s_lshl_b32 s24, s20, 8"); e(f"v_and_b32 v{vE[3]}, 0xf0, v{vL16}"); e(f"v_add_u32 v{vE[3]}, s24, v{vE[3]}"); e(f"v_add_u32 v{vE[0]}, {QOFF}, v{vE[3]}")
            e(f"s_add_u32 s24, s25, {QOFF}"); e(f"v_add_u32 v{vE[1]}, s24, v{vL16}")
            if k == 2:
                e(f"v_add_u32 v{vE[3]}, s63, v{vE[3]}"); e("s_add_u32 s24, s25, s63"); e(f"v_add_u32 v{vE[2]}, s24, v{vL16}")
            e("s_barrier")
            st3(10)
            if stamp in (1, 2, 4): e("s_memrealtime s[96:97]")
            e(f"ds_read_b128 {R(ma,4)}, v{vE[0]} offset:32768"); b.st.read('ml', 1)
            if k == 2: e(f"ds_read_b128 {R(mb,4)}, v{vE[3]} offset:32768"); b.st.read('ml', 1)
            def prd(i):
                dst, adr = (vH, vE[1]) if i < 8 else (vQ, vE[2])
                def f(bb):
                    e(f"ds_read_b128 {R(dst+4*(i&7),4)}, v{adr} offset:{1024*(i&7)}"); bb.st.read(('p', i), 1)
                return f
            xs = [m, ma, mb][:k+1]
            fac = [lambda bb: bb.st.need(['ml'])]
            for q in range(2): fac.append(f"v_max_f32 v{t+q}, v{m+q}, v{ma+q}" if k == 1 else f"v_max3_f32 v{t+q}, v{m+q}, v{ma+q}, v{mb+q}")
            for x in xs:
                for q in range(2): fac.append(f"v_sub_f32 v{x+q}, v{x+q}, v{t+q}")
            for x in xs:
                for q in range(2): fac.append(f"v_exp_f32 v{x+q}, v{x+q}")
            for q in range(2): fac.append(f"v_mul_f32 v{l+q}, v{m+q}, v{lsrc[q]}")
            for x, y in [(ma, la), (mb, lb)][:k]:
                for q in range(2): fac.append(f"v_fmac_f32 v{l+q}, v{x+q}, v{y+q}")
            for q in range(2): fac.append(f"v_rcp_f32 v{l+q}, v{l+q}")
            fac.append("s_nop 0")
            for x in xs:
                for q in range(2): fac.append(f"v_mul_f32 v{x+q}, v{x+q}, v{l+q}")
            for g in range(6, 16): fill[g] = fac[len(fac)*(g-6)//10:len(fac)*(g-5)//10]
            for i in range(8): fill[7+i] = fill.get(7+i, []) + [prd(i)]
        else:
            if stamp in (1, 2, 4): e("s_memrealtime s[96:97]")
            for q in range(2): fill[10+q] = [f"v_rcp_f32 v{l+q}, v{lsrc[q]}"]
        sa = stage_addr()
        for g in range(6): fill[g] = sa[len(sa)*g//6:len(sa)*(g+1)//6]
        b = stepB(b, fill, None)
        st3(13)
        if k == 2:
            for i in range(8, 16): prd(i)(b)
        g1 = m if k else l
        st3(14)
        for i in range(4):
            for db in (2*i, 2*i+1):
                o = vO + 8*db
                for pi in range(k):
                    src = vH if pi == 0 else vQ
                    b.st.need([('p', 8*pi+db)])
                    for kk in range(4):
                        a = vS[0] + 8*pi + 2*kk
                        e(f"v_lshlrev_b32 v{a}, 16, v{src+4*db+kk}"); e(f"v_and_b32 v{a+1}, 0xffff0000, v{src+4*db+kk}")
                for kk in range(4): e(f"v_pk_mul_f32 {R(o+2*kk,2)}, {R(o+2*kk,2)}, {R(g1,2)} {sel(kk >> 1, 2)}")
                for pi in range(k):
                    g = ma if pi == 0 else mb
                    for kk in range(4):
                        a = vS[0] + 8*pi + 2*kk
                        e(f"v_pk_fma_f32 {R(o+2*kk,2)}, {R(a,2)}, {R(g,2)}, {R(o+2*kk,2)} {sel(kk >> 1, 3)}")
                if i and (k or db & 1):
                    if k: outstore(b, i-1, db & 1)
                    else: outstore(b, i-1, 0); outstore(b, i-1, 1)
            outcvt(i, 0); outcvt(i, 1); outstage(b, i, 0); outstage(b, i, 1)
            if i < 3: st3(15+i)
        outstore(b, 3, 0); outstore(b, 3, 1)
        if isinstance(wbk, int):
            e(f"s_lshr_b32 s24, {hex(wbk)}, s22"); e("s_and_b32 s24, s24, 1"); e("s_cmp_gt_u32 s24, s20"); e("s_cbranch_scc0 L_done")
            e("s_waitcnt vmcnt(0)"); e("buffer_wbl2 sc1")
        elif wbk:
            e(f"v_lshlrev_b32 v{vX+6}, 7, v1")
            e(f"buffer_load_dword v{vX+7}, v{vX+6}, s[40:43], s59 offen {wbk}")
        e("s_branch L_done")
    final(1)
    e("L_own13:")
    e("s_cmp_eq_u32 s51, 3"); e("s_cbranch_scc0 L_solo")
    final(2)
    e("L_solo:")
    final(0)
    e("L_helper:")
    if stamp in (1, 2, 4): e("s_memrealtime s[96:97]")
    e(f"s_waitcnt vmcnt({[0, 2, 1, 1][preread]})")
    e(f"v_readfirstlane_b32 s24, v{vLK}")
    e("s_lshl_b32 s69, s20, 10"); e("s_add_u32 s69, s69, s55"); e("s_add_u32 s69, s69, 32768")
    e("s_lshr_b32 s24, s24, s91"); e("s_and_b32 s24, s24, 15"); e(f"s_cmp_eq_u32 s24, {'16' if force_slow else '0' if noann else 's89'}"); e("s_cbranch_scc0 L_hslow")
    for mode in (1, 2):
        sc = "" if mode == 1 else "sc1"
        if mode == 1:
            srd = "s[44:47]"
        else:
            e("L_hslow:")
            e(f"s_add_u32 s69, s69, {SLOWOFF}"); e("s_add_u32 s56, s55, s25"); e(f"s_add_u32 s56, s56, {SLOWOFF}")
            srd = "s[28:31]"
        if stamp: e(f"s_mov_b32 s67, {mode}")
        e("s_add_u32 s58, s56, 4096")
        def pub(i):
            if i == 7: e("s_nop 2")
            for k in range(4): e(f"v_cvt_pk_bf16_f32 v{vH+4*i+k}, v{vO+8*i+2*k}, v{vO+8*i+2*k+1}")
            e(f"buffer_store_dwordx4 {R(vH+4*i,4)}, v{vL16}, {srd}, s{56 if i < 4 else 58} offen offset:{(i&3)*1024} {sc}")
        if mode == 1:
            fl = ["s_lshl_b32 s24, s66, 7", "s_lshl3_add_u32 s24, s20, s24", "s_lshl1_add_u32 s24, s23, s24", f"s_add_u32 s24, s24, {FLAGOFF}", f"v_mov_b32 v{vE[1]}, 1"]
        else:
            fl = ["s_lshr_b32 s24, s23, 1", "s_lshl1_add_u32 s24, s20, s24", "s_add_u32 s24, s24, s91", "s_lshl_b32 s24, 16, s24", f"v_mov_b32 v{vE[1]}, s24"]
        fill = {0: fl[:2], 1: fl[2:4], 2: [fl[4]], 3: ["s_nop 0"], 4: [f"v_mov_b32 v{vM+2}, v{vLA}"], 5: [f"v_mov_b32 v{vM+3}, v{vLA+4}"],
                6: [f"buffer_store_dwordx4 {R(vM,4)}, v{vL16}, s[28:31], s69 offen {sc}"]}
        post = preread == 2 and mode == 1
        if post: fill[7] = [f"v_lshlrev_b32 v{vX+6}, 7, v1"]
        stepB(B, fill, pub)
        if post: e(f"buffer_load_dword v{vX+7}, v{vX+6}, s[44:47], s56 offen {prepol}")
        e("s_mov_b64 exec, 1")
        e(f"s_waitcnt vmcnt({1 if post else 0})")
        if mode == 1:
            e(f"buffer_store_dword v{vE[1]}, v{vZ}, s[28:31], s24 offen")
            e("s_branch L_hx")
        else:
            e(f"buffer_atomic_or v{vE[1]}, v{vZ}, s[36:39], s57 offen")
    e("L_hx:")
    e("s_mov_b64 exec, -1")
    e("s_cmp_eq_u32 s84, 0"); e("s_cbranch_scc1 L_done")
    next_seg()
    if stamp: e("s_mov_b32 s80, 1")
    e("s_branch L_cseg")
    e("L_done:")
    st3(11)
    if enc is not None:
        T, which = enc[:2]
        if len(enc) > 2:
            e("s_and_b32 s72, s89, 7"); e(f"s_lshr_b32 s72, {enc[2]}, s72"); e("s_and_b32 s72, s72, 1"); e("s_cbranch_scc0 L_end")
        e("s_waitcnt vmcnt(0)")
        e("s_memrealtime s[98:99]")
        e("s_waitcnt lgkmcnt(0)")
        e(f"s_add_u32 s72, s{which}, {T*100}")
        if len(enc) > 3:
            e(f"s_sub_u32 s73, s{which}, s92"); e(f"s_sub_i32 s73, s73, {int(enc[4]*100)}"); e(f"s_mul_i32 s73, s73, {enc[3]}"); e(f"s_add_u32 s72, s92, {T*100}"); e("s_add_u32 s72, s72, s73")
        e("L_spin:")
        e("s_memrealtime s[74:75]"); e("s_waitcnt lgkmcnt(0)")
        e("s_sub_u32 s73, s74, s72"); e("s_cmp_lt_i32 s73, 0"); e("s_cbranch_scc1 L_spin")
        e("s_endpgm")
    if stamp:
        e("s_waitcnt vmcnt(0)")
        e("s_memrealtime s[98:99]"); e("s_and_b32 s72, s89, 7")
        e("s_cmp_lg_u32 s20, 0"); e("s_cbranch_scc1 L_end")
        e("s_waitcnt lgkmcnt(0)")
        e("s_lshl_b32 s67, s67, 8"); e("s_or_b32 s72, s72, s67"); e("s_lshl_b32 s67, s23, 16"); e("s_or_b32 s72, s72, s67"); e("s_lshl_b32 s67, s51, 20"); e("s_or_b32 s72, s72, s67")
        for i, r in enumerate(["s92", "s94", "s96", "s98", "s72", "s21", "s79", "s53"]): e(f"v_mov_b32 v{24+i}, {r}")
        e("s_lshl_b32 s24, s2, 5"); e(f"s_add_u32 s24, s24, {WSB-256*32}"); e("v_mov_b32 v2, 0")
        if stamp in (2, 3):
            if stamp == 3: e(f"v_writelane_b32 v{vST}, s98, 12")
            e("s_mul_i32 s25, s2, 768"); e(f"s_add_u32 s25, s25, {WSB-256*32-256*768}"); e("v_lshlrev_b32 v3, 2, v1")
            for i in range(3 if stamp == 2 else 1): e(f"buffer_store_dword v{vST+i}, v3, s[28:31], s25 offen offset:{256*i}")
        e("s_mov_b64 exec, 1")
        e("buffer_store_dwordx4 v[24:27], v2, s[28:31], s24 offen"); e("buffer_store_dwordx4 v[28:31], v2, s[28:31], s24 offen offset:16")
    e("s_endpgm")
    e("L_hooks:"); e("s_mov_b32 s68, 0"); e("s_call_b64 s[64:65], L_hook"); e("s_branch L_loop")
    e("L_hook:")
    if cp2:
        e("s_getpc_b64 s[70:71]"); e("L_pc2:"); e("s_sub_u32 s70, s70, L_pc2-L_epi"); e("s_subb_u32 s71, s71, 0")
        e("s_cmp_eq_u32 s20, 3"); e("s_cselect_b32 s24, L_wend-L_epi-9216, 0"); e("s_mul_i32 s72, s20, 3072"); e("s_add_u32 s24, s24, s72")
        e(f"v_lshl_add_u32 v{vX+6}, v1, 7, s24"); e(f"v_min_u32 v{vX+6}, L_end-L_epi, v{vX+6}")
        e("s_mov_b32 exec_hi, 0")
        e(f"global_load_dword v{vX+7}, v{vX+6}, s[70:71]")
        e("s_mov_b32 exec_hi, -1")
    e(f"buffer_load_dword v{vLK}, v{vZ}, s[36:39], s57 offen sc1")
    if preread:
        e(f"v_lshlrev_b32 v{vX+6}, 7, v1")
        if preread == 1: e(f"buffer_load_dword v{vX+7}, v{vX+6}, s[44:47], s56 offen {prepol}")
        e("s_lshl_b32 s24, s20, 10"); e("s_add_u32 s24, s24, s55"); e("s_add_u32 s24, s24, 32768"); e(f"v_add_u32 v{vX+6}, s24, v{vX+6}")
        e("s_lshl_b32 s24, s66, 7"); e(f"s_add_u32 s24, s24, {FLAGOFF}"); e(f"v_writelane_b32 v{vX+6}, s24, 2")
        e("s_mov_b64 exec, 7")
        e(f"buffer_load_dword v{vX+7}, v{vX+6}, s[28:31], 0 offen {prepol}")
        e("s_mov_b64 exec, -1")
    e("s_setpc_b64 s[64:65]")
    e("L_ann:")
    e("s_lshl_b32 s24, s89, s91"); e(f"v_mov_b32 v{vE[0]}, s24"); e(f"v_mov_b32 v{vE[1]}, 0")
    e("s_lshr_b32 s24, s66, 1"); e("s_lshl_b32 s24, s24, 2")
    e("s_mov_b64 exec, 1")
    e("s_waitcnt vmcnt(0)")
    if not noann: e(f"buffer_atomic_or v{vE[0]}, v{vE[1]}, s[36:39], s24 offen")
    e("s_mov_b64 exec, -1")
    e("s_branch L_annr")
    for kb in range(2):
        e(f"L_mask{kb}:")
        for tt in range(2):
            for r in range(4):
                e(f"v_cmp_lt_i32 vcc, {32*kb + 16*tt + 4*r}, v{vX}"); e("s_nop 1")
                for qh in range(2):
                    x = sreg(kb, tt, qh) + r
                    e(f"v_cndmask_b32 v{x}, v{vX+1}, v{x}, vcc")
        e(f"s_branch L_maskr{kb}")
    for n, p in stubs:
        e(f"L_fbs{n}:"); e(f"s_call_b64 s[64:65], L_fb{p}"); e(f"s_branch L_fbr{n}")
    for p in range(2):
        e(f"L_fb{p}:")
        e("s_nop 15")
        rowmax(p, vX, vX+2)
        for q in range(2): e(f"v_add_f32 v{vX+q}, {hex(f2u(BIAS))}, v{vX+q}")
        for q in range(2): e(f"v_max_f32 v{vX+q}, 0, v{vX+q}")
        for q in range(2): e(f"v_sub_f32 v{vX+2+q}, 0, v{vX+q}")
        for q in range(2): e(f"v_exp_f32 v{vX+2+q}, v{vX+2+q}")
        subm(vNM, 8, vX); subm(vS[p], 16, vX); subm(vS[1-p], 16, vX)
        for r in range(72): e(f"v_mul_f32 v{vO+r}, v{vX+2+((r>>2)&1)}, v{vO+r}")
        for c2, t in sm_ops(p): e(t)
        e("s_nop 1")
        e("s_setpc_b64 s[64:65]")

    e(".p2align 6")
    e("L_aux:")
    if lprio: e(f"s_setprio {lprio}")
    e("s_waitcnt lgkmcnt(0)")
    for i, r in enumerate(PARAMS): e(f"v_readlane_b32 {r}, v30, {i}")
    e("s_mov_b32 s88, 0")
    e("s_cmp_eq_u32 s48, 0"); e("s_cbranch_scc1 L_end")
    e("s_cmp_eq_u32 s84, 0"); e("s_cbranch_scc1 L_nob")
    e("s_lshl_b32 s24, s86, 10"); e("s_lshl2_add_u32 s24, s73, s24"); e("v_lshl_add_u32 v3, v1, 4, s24")
    e("global_load_dword v18, v3, s[10:11]"); e("global_load_dword v19, v3, s[10:11] offset:8")
    e("L_nob:")
    e("s_lshl_b32 s79, s80, 16"); e("s_lshr_b32 s80, s80, 16"); e("s_mov_b32 s72, 0x80000000")
    if LATE:
        e("s_cmp_ge_u32 s48, 5"); e("s_cbranch_scc0 L_wok")
        e(f"s_bfe_u32 s24, s2, {hex(((len(LATE)-1).bit_length() << 16) | 3)}")
        for c_, p in enumerate(LATE):
            if p is not None: e(f"s_cmp_eq_u32 s24, {c_}"); e(f"s_cbranch_scc1 L_late{p}")
    e("L_wok:")
    st3(6)
    if not AS: e("s_waitcnt vmcnt(16)"); st3(9); e("s_barrier")
    e("s_mov_b32 s62, 1")
    e("L_wok2:")
    e("s_mov_b32 s82, 0")
    e("s_sub_u32 s83, s48, 1")
    e("s_cmp_eq_u32 s84, 0"); e(f"s_cselect_b32 s24, {NENDL}, 0"); e("s_cmp_eq_u32 s23, 1"); e(f"s_cselect_b32 s24, {NEND}, s24"); e("s_sub_i32 s78, s48, s24"); e("s_min_i32 s78, s78, s83")
    def wbody(a, cls, cond=False):
        pos = (a-1, a+7) if cls == 1 else (a-9, a-1)
        def pre(j):
            e(f"s_waitcnt vmcnt({a-1})")
            if j == pos[0] and cond:
                e("s_cmp_eq_u32 s82, 1"); e("s_mov_b32 s82, 0"); e("s_cbranch_scc1 L_wskip"); e("s_barrier"); e("L_wskip:")
            elif j in pos: e("s_barrier")
        shiftkv(); nextk()
        for g in range(4): group(g, "s57", pre)
        if pos[1] == 16: pre(16)
        unit_post()
        e("s_add_u32 s62, s62, 1")
    As = list(range(AMIN, AMAX))
    e("s_cmp_ge_i32 s62, s78"); e("s_cbranch_scc1 L_wend")
    e("s_cmp_ge_u32 s80, 9"); e("s_cbranch_scc1 L_wc2")
    e("s_waitcnt vmcnt(8)"); e("s_barrier"); e("s_mov_b32 s82, 1")
    lo = [a for a in (8, 7, 6, 5, 4, 3, 2) if a in As]; hi = [a for a in (10, 11, 9, 12, 13, 14, 15) if a in As]
    for a in lo[:-1]:
        e(f"s_cmp_eq_u32 s80, {a}"); e(f"s_cbranch_scc1 L_w{a}")
    e(f"s_branch L_w{lo[-1]}")
    e("L_wc2:")
    for a in hi[:-1]:
        e(f"s_cmp_eq_u32 s80, {a}"); e(f"s_cbranch_scc1 L_w{a}")
    e(f"s_branch L_w{hi[-1]}")
    for a in As:
        cls = 1 if a <= 8 else 2
        e(f"L_wh{a}:")
        wbody(a+1, cls)
        e(f"L_w{a}:")
        e("s_cmp_ge_i32 s62, s78"); e("s_cbranch_scc1 L_wend")
        e("s_add_u32 s72, s72, s79"); e(f"s_cbranch_scc1 L_wh{a}")
        wbody(a, cls)
        e(f"s_branch L_w{a}")
    for p in sorted(set(x for x in (LATE or []) if x is not None)):
        e(f"L_late{p}:")
        pos = [p, p+LG[0], p+LG[0]+LG[1], p+LG[0]+2*LG[1], p+LG[0]+3*LG[1]]
        pos = [min(32, max(x, v)) for x, v in zip(pos, [0, A0-9, A0-1, A0+7, A0+15])]
        for u in range(2):
            def pre(j):
                e(f"s_waitcnt vmcnt({A0-1})")
                for x in pos:
                    if x == 16*u+j: e("s_barrier")
            shiftkv(); nextk()
            for g in range(4): group(g, "s57", pre)
            if u == 1 and 32 in pos: pre(16)
            unit_post()
        e("s_mov_b32 s62, 3")
        e("s_branch L_wok2")
    e("L_wend:")
    e("s_cmp_ge_i32 s62, s83"); e("s_cbranch_scc1 L_wdone")
    wbody(16, 2, True)
    e("s_branch L_wend")
    e("L_wdone:")
    e("s_cmp_eq_u32 s48, 1"); e("s_cbranch_scc1 L_wl00")
    shiftkv()
    group(1, "s57"); group(3, "s57")
    unit_post()
    e("L_wl00:")
    e("s_cmp_eq_u32 s23, 1"); e("s_cselect_b32 s24, s51, 1"); e("s_cmp_gt_u32 s24, 1"); e("s_cbranch_scc1 L_lown")
    X = 0
    if preread == 3:
        X = 2
        e(f"s_mul_i32 s24, s66, {2*PSTRIDE}"); e(f"s_add_u32 s24, s24, {PSTRIDE}"); e("s_lshl_b32 s25, s66, 15")
        e("s_cmp_eq_u32 s23, 2")
        e("s_cselect_b32 s68, s18, s14"); e("s_cselect_b32 s69, s19, s15"); e("s_cselect_b32 s24, s24, s25"); e(f"s_cselect_b32 s70, {WSB}, 0"); e(f"s_max_u32 s70, s70, {QB}")
        e("s_and_b32 s69, s69, 0xffff"); e("s_mov_b32 s71, 0x20000")
        e("s_lshl_b32 s25, s73, 14"); e("s_add_u32 s24, s24, s25"); e("s_add_u32 s25, s24, 8192"); e("v_lshlrev_b32 v30, 7, v1")
        e(f"buffer_load_dword v31, v30, s[68:71], s24 offen {prepol}"); e(f"buffer_load_dword v33, v30, s[68:71], s25 offen {prepol}")
    e("s_cmp_eq_u32 s48, 1"); e("s_cbranch_scc1 L_wl1")
    e("s_cmp_eq_u32 s82, 1"); e("s_cbranch_scc1 L_wl0")
    e(f"s_waitcnt vmcnt({16+X})"); e("s_barrier")
    e("L_wl0:")
    e(f"s_waitcnt vmcnt({8+X})"); e("s_barrier")
    e("L_wl1:")
    e("s_cmp_eq_u32 s84, 0"); e("s_cbranch_scc1 L_wlast")
    next_seg()
    e("s_cmp_eq_u32 s83, 0"); e("s_cbranch_scc0 L_btok"); e("s_waitcnt vmcnt(0)"); e("L_btok:")
    e("v_lshlrev_b32 v4, 15, v18"); e("v_lshlrev_b32 v5, 15, v19")
    qaddr(); qissue()
    e(f"s_waitcnt vmcnt({20+X})"); e("s_barrier")
    e(f"s_waitcnt vmcnt({16+X})"); e("s_barrier")
    e("s_mov_b32 s52, s49")
    first_loads()
    e("s_branch L_wok")
    e("L_wlast:")
    st3(10)
    e(f"s_waitcnt vmcnt({4+X})"); e("s_barrier")
    e(f"s_waitcnt vmcnt({X})"); st3(11); e("s_barrier")
    e("s_branch L_lfin")
    e("L_lown:")
    e("s_lshl_b32 s58, s66, 7"); e("s_lshl_b32 s24, s73, 4"); e("s_add_u32 s58, s58, s24"); e(f"s_add_u32 s58, s58, {FLAGOFF}")
    e("s_mov_b32 s28, s18"); e("s_and_b32 s29, s19, 0xffff"); e(f"s_mov_b32 s30, {WSB}"); e("s_mov_b32 s31, 0x20000")
    e("s_mov_b32 s68, s14"); e("s_and_b32 s69, s15, 0xffff"); e(f"s_mov_b32 s70, {QB}"); e("s_mov_b32 s71, 0x20000")
    e("s_cmp_eq_u32 s51, 3"); e("s_cselect_b32 s59, 15, 5")
    e("s_sub_u32 s63, s57, s77")
    e("s_mov_b32 s62, 2"); e("s_mov_b32 s67, 0"); e("s_mov_b32 s61, 0x400000"); e("v_mov_b32 v3, 0")
    e("s_lshl_b32 s64, s73, 14"); e("s_lshl_b32 s65, s66, 15"); e("s_add_u32 s65, s65, s64")
    e(f"s_mul_i32 s54, s66, {2*PSTRIDE}")
    e("v_and_b32 v30, 15, v1"); e("v_bfe_u32 v31, v1, 4, 1"); e("v_lshlrev_b32 v30, 4, v30"); e("v_lshl_add_u32 v30, v31, 10, v30")
    e("s_cmp_eq_u32 s48, 1"); e("s_cbranch_scc0 L_lo2")
    e("s_load_dwordx4 s[44:47], s[18:19], s58 glc")
    e("s_branch L_lp")
    e("L_lo2:")
    e("s_cmp_eq_u32 s82, 1"); e("s_cbranch_scc1 L_lo3")
    e("s_waitcnt vmcnt(16)"); e("s_barrier")
    e("L_lo3:")
    e("s_waitcnt vmcnt(8)")
    e("s_load_dwordx4 s[44:47], s[18:19], s58 glc")
    e("s_barrier")
    st3(10); st3(11)
    e("L_lp:")
    e("s_waitcnt lgkmcnt(0)")
    e("s_lshl1_add_u32 s24, s45, s44"); e("s_lshl2_add_u32 s24, s46, s24"); e("s_lshl3_add_u32 s24, s47, s24")
    e("s_cmp_eq_u32 s24, s59"); e("s_cbranch_scc0 L_lno")
    st3(13)
    def fetch_fast(pi):
        base = QOFF if pi == 0 else "s63"
        e(f"s_add_u32 s25, s64, {base}")
        if pi == 0: e("s_mov_b32 s24, s65")
        else:
            e(f"s_add_u32 s54, s54, {PSTRIDE}"); e("s_add_u32 s24, s54, s64")
        for hh in range(4):
            e("s_mov_b32 m0, s25"); e("s_add_u32 s25, s25, 4096")
            for j in range(4 - nofetch): e(f"buffer_load_dwordx4 v{vL16}, {'s[68:71]' if pi == 0 else 's[28:31]'}, s24 offen offset:{1024*j} {dpol} lds")
            e("s_add_u32 s24, s24, 4096")
        e("s_lshl_b32 s25, s73, 9"); e(f"s_add_u32 s25, s25, {base}"); e("s_add_u32 m0, s25, 32768")
        e("s_lshl_b32 s25, s73, 11"); e("s_add_u32 s25, s25, s54"); e("s_add_u32 s25, s25, 32768")
        e("s_mov_b32 exec_hi, 0")
        e(f"buffer_load_dwordx4 v30, s[28:31], s25 offen {dpol} lds")
        e("s_mov_b32 exec_hi, -1")
    fetch_fast(0)
    st3(14)
    e("s_cmp_eq_u32 s62, 2"); e("s_cbranch_scc0 L_lf1")
    e("s_waitcnt vmcnt(21)"); e("s_barrier")
    e("L_lf1:")
    e("s_cmp_eq_u32 s51, 3"); e("s_cbranch_scc1 L_lf3")
    e("s_cmp_eq_u32 s62, 0"); e("s_cbranch_scc1 L_lbp")
    e("s_waitcnt vmcnt(17)"); e("s_barrier")
    e("s_branch L_lbp")
    e("L_lf3:")
    fetch_fast(1)
    e("s_cmp_eq_u32 s62, 0"); e("s_cbranch_scc1 L_lbp")
    e("s_waitcnt vmcnt(34)"); e("s_barrier")
    e("s_branch L_lbp")
    e("L_lno:")
    e("s_or_b32 s24, s24, s67"); e("s_cmp_eq_u32 s24, s59"); e("s_cbranch_scc1 L_lgo")
    e("s_cmp_eq_u32 s62, 0"); e("s_cbranch_scc1 L_lp2")
    e("s_waitcnt vmcnt(4)")
    e("s_cmp_eq_u32 s62, 2"); e("s_cbranch_scc1 L_lp1")
    e("s_waitcnt vmcnt(0)")
    e("L_lp1:")
    e("s_load_dwordx4 s[44:47], s[18:19], s58 glc")
    e("s_barrier"); e("s_sub_u32 s62, s62, 1")
    e("s_branch L_lp")
    e("L_lp2:")
    e("s_load_dwordx4 s[44:47], s[18:19], s58 glc")
    e("s_sub_u32 s61, s61, 1"); e("s_cbranch_scc1 L_lgo2")
    e("s_and_b32 s24, s61, 15"); e("s_cbranch_scc1 L_lp")
    e("s_mov_b32 s32, s16"); e("s_and_b32 s33, s17, 0xffff"); e("s_mov_b32 s34, 256"); e("s_mov_b32 s35, 0x20000")
    e("s_lshr_b32 s24, s66, 1"); e("s_lshl_b32 s24, s24, 2")
    e("buffer_load_dword v31, v3, s[32:35], s24 offen sc1")
    e("s_lshl2_add_u32 s25, s73, s91"); e("s_add_u32 s25, s25, 4")
    e("s_waitcnt vmcnt(0)")
    e("v_readfirstlane_b32 s24, v31"); e("s_nop 1")
    e("s_lshr_b32 s24, s24, s25"); e("s_and_b32 s67, s24, s59")
    e("s_branch L_lp")
    e("L_lgo2:")
    e("s_waitcnt lgkmcnt(0)")
    e("L_lgo:")
    e("buffer_inv sc1"); e("s_waitcnt vmcnt(0)")
    e("s_mov_b32 s39, 0x20000")
    def fetch(pi):
        for k in range(2):
            e(f"s_lshl1_add_u32 s52, s73, {k}")
            e(f"s_lshl1_add_u32 s24, s66, {pi}"); e(f"s_mul_i32 s24, s24, {PSTRIDE}")
            e(f"s_bitcmp1_b32 s67, {2*k+pi}"); e(f"s_cselect_b32 s25, {SLOWOFF}, 0"); e("s_add_u32 s24, s24, s25")
            e("s_lshl_b32 s25, s52, 8"); e(f"s_add_u32 s25, s25, {QOFF if pi == 0 else 's63'}"); e("s_add_u32 m0, s25, 32768")
            e("s_lshl_b32 s25, s52, 10"); e("s_add_u32 s25, s25, s24"); e("s_add_u32 s25, s25, 32768")
            e("s_mov_b64 exec, 0xffff")
            e(f"buffer_load_dwordx4 v{vL16}, s[28:31], s25 offen sc1 lds")
            e("s_mov_b64 exec, -1")
            if pi == 0:
                e("s_lshl_b32 s25, s66, 15"); e(f"s_bitcmp1_b32 s67, {2*k}")
                e("s_cselect_b32 s36, s28, s68"); e("s_cselect_b32 s37, s29, s69"); e("s_cselect_b32 s38, s30, s70"); e("s_cselect_b32 s24, s24, s25")
            e("s_lshl_b32 s25, s52, 13"); e("s_add_u32 s24, s24, s25")
            e(f"s_add_u32 s25, s25, {QOFF if pi == 0 else 's63'}")
            for hh in range(2):
                e("s_mov_b32 m0, s25"); e("s_add_u32 s25, s25, 4096")
                for j in range(4): e(f"buffer_load_dwordx4 v{vL16}, {'s[36:39]' if pi == 0 else 's[28:31]'}, s24 offen offset:{1024*j} sc1 lds")
                e("s_add_u32 s24, s24, 4096")
    fetch(0)
    e("s_cmp_eq_u32 s51, 3"); e("s_cbranch_scc0 L_lbp")
    fetch(1)
    e("L_lbp:")
    e("s_waitcnt vmcnt(0)"); st3(12); e("s_barrier")
    e("L_lfin:")
    if stamp == 3:
        e("s_cmp_lg_u32 s20, 4"); e("s_cbranch_scc1 L_end")
        e("s_mov_b32 s28, s18"); e("s_and_b32 s29, s19, 0xffff"); e(f"s_mov_b32 s30, {WSB}"); e("s_mov_b32 s31, 0x20000")
        e("s_mul_i32 s25, s2, 768"); e(f"s_add_u32 s25, s25, {WSB-256*32-256*768}"); e("v_lshlrev_b32 v3, 2, v1")
        e(f"buffer_store_dword v{vST}, v3, s[28:31], s25 offen offset:256")
    e("L_end:"); e("s_endpgm")
    e('.section .rodata,"a"'); e(".p2align 6"); e(f".amdhsa_kernel {KN}")
    e("  .amdhsa_next_free_vgpr 256"); e("  .amdhsa_next_free_sgpr 102"); e("  .amdhsa_accum_offset 256"); e("  .amdhsa_group_segment_fixed_size 0")
    e("  .amdhsa_kernarg_size 64"); e("  .amdhsa_user_sgpr_count 2"); e("  .amdhsa_user_sgpr_kernarg_segment_ptr 1"); e("  .amdhsa_system_sgpr_workgroup_id_x 1")
    e(".end_amdhsa_kernel")
    out = []
    for t in L:
        if t.endswith(":") and t[:-1] in CM: out.append("; " + CM[t[:-1]])
        out.append(t if (t.endswith(":") or t.startswith((";", ".", " "))) else "    " + t.rstrip())
    return "\n".join(out) + "\n"
if __name__ == "__main__":
    from build import build
    specs = []
    for name, kw in eval(sys.argv[1]).items():
        open(name + ".s", "w").write(gen(**kw))
        specs.append(build(name + ".s"))
        print(name, "packed step cycles", PACKINFO[-1], file=sys.stderr)
    print(" ".join(specs))
```

```python
import gen8, re
from build import build
KN = gen8.KN
post = """.text
.globl post_kernel
.p2align 8
.type post_kernel,@function
post_kernel:
s_cmp_ge_u32 s2, 1
s_cbranch_scc1 P_end
s_load_dwordx16 s[4:19], s[0:1], 0
v_mov_b32 v2, 0
s_waitcnt lgkmcnt(0)
""" + "".join(f"v_writelane_b32 v2, s{4+i}, {i}\n" for i in range(16)) + """v_lshlrev_b32 v1, 2, v0
global_store_dword v1, v2, s[16:17]
P_end:
s_endpgm
.section .rodata,"a"
.p2align 6
.amdhsa_kernel post_kernel
  .amdhsa_next_free_vgpr 8
  .amdhsa_next_free_sgpr 32
  .amdhsa_accum_offset 8
  .amdhsa_group_segment_fixed_size 0
  .amdhsa_kernarg_size 64
  .amdhsa_user_sgpr_count 2
  .amdhsa_user_sgpr_kernarg_segment_ptr 1
  .amdhsa_system_sgpr_workgroup_id_x 1
.end_amdhsa_kernel
"""
def mk(name, **kw):
    t = gen8.gen(**kw)
    t = t.replace("; @launch grid=(256,1,1) block=(384,1,1) lds=156736", f"; @launch kernel={KN} grid=(256,1,1) block=(384,1,1) lds=156736\n; @launch kernel=post_kernel grid=(1,1,1) block=(64,1,1) lds=0")
    open(name + ".s", "w").write(t + post); print(build(name + ".s"))
mk("p0", stamp=1, enc=(60,98,255,10,28))
```
